```python
import torch

def _softmax(x, axis=-1):
    return torch.softmax(x, dim=axis)
def _gelu(x):
    return torch.nn.functional.gelu(x, approximate="tanh")
def _silu(x):
    return torch.nn.functional.silu(x)
def _sigmoid(x):
    return torch.sigmoid(x)
def _layernorm(x, axis=-1, eps=1e-5):
    m = x.mean(dim=axis, keepdim=True)
    v = x.var(dim=axis, keepdim=True, unbiased=False)
    return (x - m) / torch.sqrt(v + eps)
def _scatter_add(tgt, idx, src, axis=0):
    return tgt.clone().index_add_(axis, idx, src)
def _segment_sum(src, seg, n):
    out = torch.zeros((n,) + src.shape[1:], dtype=src.dtype)
    return out.index_add_(0, seg, src)
def _pad(x, pw):
    flat = tuple(v for pair in reversed(pw) for v in pair)
    return torch.nn.functional.pad(x, flat)

kernel_name = 'concat_heads__gqa_block_cached__compressed_kv_cla__decode'

def setup_inputs():

    _w = (lambda a: (lambda t: t.to(torch.bfloat16) if t.is_floating_point() else t)(torch.as_tensor(a)))
    def _A_setup():
        B, Sq, D = 2, 1, 576
        Hq, Hkv, Sk, Dh = 32, 16, 4096, 128
        assert Hq % Hkv == 0, (Hq, Hkv)
        return {
            "x": _w((lambda *s: torch.randn(*s, dtype=torch.bfloat16) * 1.6)(B, Sq, D)),
            "k_cache": _w((lambda *s: torch.randn(*s, dtype=torch.bfloat16) * 1.6)(B, Hkv, Sk, Dh)),
            "v_cache": _w((lambda *s: torch.randn(*s, dtype=torch.bfloat16) * 0.05)(B, Hkv, Sk, Dh)),
            "wq": _w((lambda *s: torch.randn(*s, dtype=torch.bfloat16) * 1.6)(D, Hq * Dh) * (D ** -0.5)),
            "wo": _w((lambda *s: torch.randn(*s, dtype=torch.bfloat16) * 0.05)(Hq * Dh, D) * ((Hq * Dh) ** -0.5)),
        }
    _A_in = _A_setup()

    def _B_setup():
        B, H, Sq, Sk, D, M = 2, 32, 1, 4096, 128, 576
        Dc = 4 * D
        return {
            "x": _w((lambda *s: torch.randn(*s, dtype=torch.bfloat16) * 3.2)(B, Sq, M)),
            "c_kv": _w((lambda *s: torch.randn(*s, dtype=torch.bfloat16) * 0.1)(B, Sk, Dc)),
            "w_q": _w((lambda *s: torch.randn(*s, dtype=torch.bfloat16) * 6.4)(M, H, D) * (M ** -0.5)),
            "w_uk": _w((lambda *s: torch.randn(*s, dtype=torch.bfloat16) * 6.4)(Dc, H, D) * (Dc ** -0.5)),
            "w_uv": _w((lambda *s: torch.randn(*s, dtype=torch.bfloat16) * 0.1)(Dc, H, D) * (Dc ** -0.5)),
            "w_o": _w((lambda *s: torch.randn(*s, dtype=torch.bfloat16) * 0.1)(H, D, M) * ((H * D) ** -0.5)),
        }
    _B_in = _B_setup()

    return {
        "A_x": _A_in["x"],
        "A_k_cache": _A_in["k_cache"],
        "A_v_cache": _A_in["v_cache"],
        "A_wq": _A_in["wq"],
        "A_wo": _A_in["wo"],
        "B_x": _B_in["x"],
        "B_c_kv": _B_in["c_kv"],
        "B_w_q": _B_in["w_q"],
        "B_w_uk": _B_in["w_uk"],
        "B_w_uv": _B_in["w_uv"],
        "B_w_o": _B_in["w_o"],
    }

def reference(A_x, A_k_cache, A_v_cache, A_wq, A_wo, B_x, B_c_kv, B_w_q, B_w_uk, B_w_uv, B_w_o):
    def _A_ref(x, k_cache, v_cache, wq, wo):
        B, Sq, D = x.shape
        Hq, Dh = 32, 128
        Hkv = k_cache.shape[1]
        rep = Hq // Hkv
        q = (lambda x, *d: x.permute(*d))((x @ wq).reshape(B, Sq, Hq, Dh), 0, 2, 1, 3)
        k = (lambda x, n, axis: torch.repeat_interleave(x, n, dim=axis))(k_cache, rep, axis=1)
        v = (lambda x, n, axis: torch.repeat_interleave(x, n, dim=axis))(v_cache, rep, axis=1)
        scores = torch.einsum("bhqd,bhkd->bhqk", q, k) * (Dh ** -0.5)
        p = _softmax(scores, axis=-1)
        o = torch.einsum("bhqk,bhkd->bhqd", p, v)
        return (lambda x, *d: x.permute(*d))(o, 0, 2, 1, 3).reshape(B, Sq, Hq * Dh) @ wo

    def _B_ref(x, c_kv, w_q, w_uk, w_uv, w_o):
        B, Sq, M = x.shape[0], x.shape[1], x.shape[2]
        Sk = c_kv.shape[1]
        H, D = w_q.shape[1], w_q.shape[2]
        q = torch.einsum("bqm,mhd->bhqd", x, w_q)
        k = torch.einsum("bkc,chd->bhkd", c_kv, w_uk)
        v = torch.einsum("bkc,chd->bhkd", c_kv, w_uv)
        scores = torch.einsum("bhqd,bhkd->bhqk", q, k) * (D ** -0.5)
        off = Sk - Sq
        qi = torch.arange(Sq)[:, None]
        kj = torch.arange(Sk)[None, :]
        cmask = kj <= (qi + off)
        scores = torch.where(cmask[None, None], scores, -1e9)
        p = _softmax(scores, axis=-1)
        ctx = torch.einsum("bhqk,bhkd->bhqd", p, v)
        return torch.einsum("bhqd,hdm->bqm", ctx, w_o)

    a = _A_ref(A_x, A_k_cache, A_v_cache, A_wq, A_wo)
    b = _B_ref(B_x, B_c_kv, B_w_q, B_w_uk, B_w_uv, B_w_o)
    return torch.concatenate([a, b], axis=-1)
```

```python
import struct
OUT='concat_heads__gqa_block_cached__compressed_kv_cla__decode.s'
L=[]
def e(s): L.append('    '+s)
def lab(s): L.append(s+':')
def f32(x): return '0x%08x'%struct.unpack('<I',struct.pack('<f',x))[0]
CS=f32(1.4426950408889634/(128**0.5))
QA=0; QB=16384; QP=32768; PARTA=98304; STATB=368640; PARTB=393216; OUTP=4587520
WSSZ=8*1024*1024
DPP=' row_mask:0xf bank_mask:0xf'
kern=[]
def begin(name):
    L.append('.globl %s'%name); L.append('.p2align 8'); L.append('.type %s,@function'%name); lab(name)
def srd(d, lo, size):
    e(f's_mov_b32 s{d}, s{lo}'); e(f's_and_b32 s{d+1}, s{lo+1}, 0xffff'); e(f's_mov_b32 s{d+2}, {size}'); e(f's_mov_b32 s{d+3}, 0x00020000')
def rowred(op, regs, tmp):
    for ror in (8,4,2,1):
        e('s_nop 1')
        for r in regs:
            e(f'{op}_dpp v{r}, v{r}, v{r} row_ror:{ror}'+DPP)

def k1():
    begin('k1_kernel')
    e('s_cmp_ge_u32 s2, 256'); e('s_cbranch_scc1 K1_END')
    e('s_load_dwordx2 s[4:5], s[0:1], 0'); e('s_load_dwordx2 s[6:7], s[0:1], 40')
    e('s_load_dwordx2 s[20:21], s[0:1], 24'); e('s_load_dwordx2 s[22:23], s[0:1], 56')
    e('s_load_dwordx2 s[24:25], s[0:1], 104')
    e('s_lshr_b32 s3, s2, 7')
    e('s_and_b32 s26, s2, 127')
    e('v_lshrrev_b32 v1, 6, v0'); e('v_and_b32 v2, 63, v0')
    e('v_lshrrev_b32 v3, 2, v2'); e('v_lshl_add_u32 v3, v1, 4, v3')
    e('v_and_b32 v4, 3, v2')
    e('s_waitcnt lgkmcnt(0)')
    e('s_cmp_eq_u32 s3, 0')
    e('s_cselect_b64 s[4:5], s[4:5], s[6:7]'); e('s_cselect_b64 s[20:21], s[20:21], s[22:23]')
    srd(8,4,2304); srd(12,20,576*8192); srd(16,24,WSSZ)
    e('s_lshl_b32 s27, s26, 6')
    e('v_lshlrev_b32 v5, 13, v3'); e('v_lshl_add_u32 v5, v4, 4, v5'); e('v_add_u32 v5, s27, v5')
    e('v_lshlrev_b32 v6, 1, v3')
    e('s_mov_b32 s28, 0')
    for i in range(9):
        e(f'buffer_load_dwordx4 v[{32+4*i}:{35+4*i}], v5, s[12:15], s28 offen')
        e('s_add_u32 s28, s28, 524288')
    for i in range(9):
        for b in range(2):
            e(f'buffer_load_ushort v{68+2*i+b}, v6, s[8:11], 0 offen offset:{b*1152+i*128}')
    for k in range(16): e(f'v_mov_b32 v{8+k}, 0')
    e('s_waitcnt vmcnt(0)')
    for i in range(18): e(f'v_lshlrev_b32 v{68+i}, 16, v{68+i}')
    for i in range(9):
        for j in range(4):
            e(f'v_lshlrev_b32 v24, 16, v{32+4*i+j}'); e(f'v_and_b32 v25, 0xffff0000, v{32+4*i+j}')
            for b in range(2):
                e(f'v_fmac_f32 v{8+b*8+2*j}, v{68+2*i+b}, v24'); e(f'v_fmac_f32 v{8+b*8+2*j+1}, v{68+2*i+b}, v25')
    for ror in (4,8):
        e('s_nop 1')
        for k in range(16): e(f'v_add_f32_dpp v{8+k}, v{8+k}, v{8+k} row_ror:{ror}'+DPP)
    e('v_lshrrev_b32 v26, 4, v2'); e('v_lshl_add_u32 v26, v1, 2, v26'); e('v_lshlrev_b32 v26, 8, v26'); e('v_lshl_add_u32 v26, v4, 6, v26')
    e('v_and_b32 v27, 15, v2'); e('v_cmp_gt_u32 vcc, 4, v27'); e('s_and_saveexec_b64 s[30:31], vcc')
    for k in range(4): e(f'ds_write_b128 v26, v[{8+4*k}:{11+4*k}] offset:{16*k}')
    e('s_mov_b64 exec, s[30:31]')
    e('s_waitcnt lgkmcnt(0)'); e('s_barrier')
    e('v_cmp_gt_u32 vcc, 64, v0'); e('s_and_saveexec_b64 s[30:31], vcc'); e('s_cbranch_execz K1_END')
    e('v_lshlrev_b32 v26, 2, v0')
    for k in range(16): e(f'ds_read_b32 v{32+k}, v26 offset:{256*k}')
    e('s_waitcnt lgkmcnt(0)')
    for k in range(1,16): e(f'v_add_f32 v32, v32, v{32+k}')
    e('v_cvt_pk_bf16_f32 v32, v32, v32')
    e('v_lshrrev_b32 v3, 4, v0'); e('v_lshlrev_b32 v3, 4, v3'); e('v_and_b32 v4, 7, v0'); e('v_lshl_add_u32 v3, v4, 1, v3')
    e('v_bfe_u32 v4, v0, 3, 1'); e('v_lshl_add_u32 v3, v4, 13, v3')
    e('s_lshl_b32 s29, s3, 14'); e('s_add_u32 s29, s29, s27'); e('v_add_u32 v3, s29, v3')
    e('buffer_store_short v32, v3, s[16:19], 0 offen')
    lab('K1_END'); e('s_endpgm')
    kern.append(('k1_kernel',96,40))

def k1b():
    begin('k1b_kernel')
    e('s_cmp_ge_u32 s2, 256'); e('s_cbranch_scc1 K1B_END')
    e('s_load_dwordx2 s[4:5], s[0:1], 64'); e('s_load_dwordx2 s[6:7], s[0:1], 104')
    e('s_lshr_b32 s3, s2, 3'); e('s_and_b32 s26, s2, 7')
    e('v_lshrrev_b32 v1, 6, v0'); e('v_and_b32 v2, 63, v0'); e('v_lshrrev_b32 v3, 4, v2'); e('v_and_b32 v4, 15, v2')
    e('s_waitcnt lgkmcnt(0)')
    srd(8,4,512*8192); srd(12,6,WSSZ)
    e('s_lshl_b32 s27, s26, 6')
    e('v_lshl_add_u32 v5, v1, 4, v3'); e('v_add_u32 v5, s27, v5')
    e('s_lshl_b32 s28, s3, 8')
    e('v_lshlrev_b32 v6, 13, v5'); e('v_lshl_add_u32 v6, v4, 4, v6'); e('v_add_u32 v6, s28, v6')
    e('v_lshlrev_b32 v7, 4, v4'); e('v_add_u32 v7, s28, v7')
    e(f'buffer_load_dwordx4 v[16:19], v7, s[12:15], 0 offen offset:0') if False else None
    e(f's_mov_b32 s29, {QB}'); e(f's_mov_b32 s30, {QB+8192}')
    e('buffer_load_dwordx4 v[16:19], v7, s[12:15], s29 offen'); e('buffer_load_dwordx4 v[20:23], v7, s[12:15], s30 offen')
    e('s_mov_b32 s29, 0')
    for i in range(4):
        e(f'buffer_load_dwordx4 v[{32+4*i}:{35+4*i}], v6, s[8:11], s29 offen'); e('s_add_u32 s29, s29, 32768')
    for k in range(8): e(f'v_mov_b32 v{8+k}, 0')
    e('s_waitcnt vmcnt(0)')
    for k in range(4):
        for i in range(4):
            for b in range(2):
                e(f'v_dot2_f32_bf16 v{8+2*i+b}, v{32+4*i+k}, v{16+4*b+k}, v{8+2*i+b}')
    e('s_nop 3')
    rowred('v_add_f32', range(8,16), None)
    e('s_nop 1')
    e('s_lshl_b32 s28, s3, 10'); e(f's_add_u32 s28, s28, {QP}')
    e('v_lshlrev_b32 v6, 1, v5'); e('v_add_u32 v6, s28, v6')
    e('v_cmp_eq_u32 vcc, 0, v4'); e('s_and_saveexec_b64 s[30:31], vcc')
    for i in range(4):
        for b in range(2):
            e(f'v_cvt_pk_bf16_f32 v{8+2*i+b}, v{8+2*i+b}, v{8+2*i+b}')
    for i in range(4):
        for b in range(2):
            e(f's_mov_b32 s29, {b*32768}')
            e(f'buffer_store_short v{8+2*i+b}, v6, s[12:15], s29 offen offset:{i*8}')
    lab('K1B_END'); e('s_endpgm')
    kern.append(('k1b_kernel',48,40))

PBUF=0; SMAX=4608; LSUM=5120; CT=5632
def k2():
    begin('k2_kernel')
    e('s_cmp_ge_u32 s2, 320'); e('s_cbranch_scc1 K2_END')
    e('s_load_dwordx2 s[4:5], s[0:1], 8'); e('s_load_dwordx2 s[6:7], s[0:1], 16')
    e('s_load_dwordx2 s[20:21], s[0:1], 48'); e('s_load_dwordx2 s[22:23], s[0:1], 104')
    e('v_lshrrev_b32 v1, 6, v0'); e('v_and_b32 v2, 63, v0'); e('v_lshrrev_b32 v3, 4, v2'); e('v_and_b32 v4, 15, v2')
    e(f's_mov_b32 s40, {CS}')
    e('s_waitcnt lgkmcnt(0)')
    srd(8,4,2*16*4096*256); srd(12,6,2*16*4096*256); srd(16,20,2*4096*1024); srd(24,22,WSSZ)
    e('s_cmp_lt_u32 s2, 64'); e('s_cbranch_scc1 K2_B')
    e('s_sub_u32 s3, s2, 64')
    e('s_lshr_b32 s30, s3, 3'); e('s_and_b32 s31, s3, 7')
    e('s_lshl_b32 s32, s30, 20'); e('s_lshl_b32 s33, s31, 17'); e('s_add_u32 s32, s32, s33')
    e('v_lshlrev_b32 v5, 14, v1'); e('v_add_u32 v5, s32, v5')
    e('v_lshl_add_u32 v6, v4, 8, v5'); e('v_lshl_add_u32 v6, v3, 4, v6')
    e('v_lshl_add_u32 v7, v2, 4, v5')
    e('s_lshl_b32 s33, s30, 9')
    e('v_lshlrev_b32 v8, 8, v4'); e('v_lshl_add_u32 v8, v3, 4, v8'); e('v_add_u32 v8, s33, v8')
    e('v_cmp_gt_u32 vcc, 2, v4'); e('v_mov_b32 v9, 0x7fffff00'); e('s_nop 1'); e('v_cndmask_b32 v8, v9, v8, vcc')
    for ks in range(4): e(f'buffer_load_dwordx4 v[{16+4*ks}:{19+4*ks}], v8, s[24:27], 0 offen offset:{QA+ks*64}')
    e('s_mov_b32 s34, 4096'); e('s_mov_b32 s35, 8192'); e('s_mov_b32 s36, 12288')
    so=['0','s34','s35','s36']
    for t in range(4):
        for ks in range(4):
            r=32+16*t+4*ks
            e(f'buffer_load_dwordx4 v[{r}:{r+3}], v6, s[8:11], {so[t]} offen offset:{ks*64}')
    for i in range(4):
        e(f'buffer_load_dwordx4 v[{96+4*i}:{99+4*i}], v7, s[12:15], 0 offen offset:{i*1024}')
    for t in range(4):
        e('s_waitcnt vmcnt(16)')
        for ks in range(4):
            r=32+16*t+4*ks
            c='0' if ks==0 else f'v[{112+4*t}:{115+4*t}]'
            e(f'v_mfma_f32_16x16x32_bf16 v[{112+4*t}:{115+4*t}], v[{16+4*ks}:{19+4*ks}], v[{r}:{r+3}], {c}')
        if t<3:
            for i in range(4):
                r=32+16*t+4*i
                e(f'buffer_load_dwordx4 v[{r}:{r+3}], v7, s[12:15], {so[t+1]} offen offset:{i*1024}')
    e('s_nop 7'); e('s_nop 3')
    for h in range(2):
        e(f'v_max_f32 v{10+h}, v{112+h}, v{116+h}'); e(f'v_max3_f32 v{10+h}, v{10+h}, v{120+h}, v{124+h}')
    rowred('v_max_f32',[10,11],None)
    e('s_nop 1')
    for h in range(2):
        for t in range(4):
            e(f'v_sub_f32 v{112+4*t+h}, v{112+4*t+h}, v{10+h}'); e(f'v_mul_f32 v{112+4*t+h}, s40, v{112+4*t+h}')
    for h in range(2):
        for t in range(4): e(f'v_exp_f32 v{112+4*t+h}, v{112+4*t+h}')
    e('s_nop 0')
    for h in range(2):
        e(f'v_add_f32 v{12+h}, v{112+h}, v{116+h}'); e(f'v_add_f32 v{14}, v{120+h}, v{124+h}'); e(f'v_add_f32 v{12+h}, v{12+h}, v14')
    rowred('v_add_f32',[12,13],None)
    e('v_lshlrev_b32 v14, 9, v1'); e('v_lshl_add_u32 v14, v2, 3, v14')
    e('v_cmp_gt_u32 vcc, 16, v2'); e('s_and_saveexec_b64 s[42:43], vcc')
    for t in range(4): e(f'ds_write_b64 v14, v[{112+4*t}:{113+4*t}] offset:{t*128}')
    e('v_lshlrev_b32 v15, 4, v1'); e(f'ds_write_b128 v15, v[10:13] offset:36864')
    e('s_mov_b64 exec, s[42:43]')
    for k in range(16): e(f'v_mov_b32 v{16+k}, 0')
    e('s_waitcnt lgkmcnt(0)')
    e('v_lshlrev_b32 v14, 9, v1'); e('v_lshl_add_u32 v14, v3, 3, v14')
    for i in range(16): e(f'ds_read_b64 v[{80+2*(i%8)}:{81+2*(i%8)}], v14 offset:{i*32}') if i<8 else None
    for i in range(16):
        if i==8:
            for ii in range(8,16): e(f'ds_read_b64 v[{112+2*(ii-8)}:{113+2*(ii-8)}], v14 offset:{ii*32}')
        pr = 80+2*i if i<8 else 112+2*(i-8)
        vr = 96+4*i if i<4 else 32+4*(i-4)
        e(f's_waitcnt vmcnt({15-i}) lgkmcnt({7-i if i<8 else 15-i})')
        for j in range(4):
            e(f'v_lshlrev_b32 v8, 16, v{vr+j}'); e(f'v_and_b32 v9, 0xffff0000, v{vr+j}')
            e(f'v_pk_fma_f32 v[{16+2*j}:{17+2*j}], v[8:9], v[{pr}:{pr+1}], v[{16+2*j}:{17+2*j}] op_sel:[0,0,0] op_sel_hi:[1,0,1]')
            e(f'v_pk_fma_f32 v[{24+2*j}:{25+2*j}], v[8:9], v[{pr}:{pr+1}], v[{24+2*j}:{25+2*j}] op_sel:[0,1,0] op_sel_hi:[1,1,1]')
    e('v_lshl_add_u32 v14, v1, 2, v3'); e('v_lshlrev_b32 v14, 10, v14'); e('v_lshl_add_u32 v14, v4, 5, v14')
    for h in range(2):
        e(f'ds_write_b128 v14, v[{16+8*h}:{19+8*h}] offset:{4096+512*h}'); e(f'ds_write_b128 v14, v[{20+8*h}:{23+8*h}] offset:{4096+512*h+16}')
    e('s_waitcnt lgkmcnt(0)'); e('s_barrier')
    e('v_cmp_gt_u32 vcc, 256, v0'); e('s_and_saveexec_b64 s[42:43], vcc'); e('s_cbranch_execz K2_END')
    e('v_lshrrev_b32 v5, 7, v0'); e('v_and_b32 v6, 127, v0')
    e('v_lshlrev_b32 v7, 2, v5')
    for w in range(8):
        e(f'ds_read_b32 v{32+w}, v7 offset:{36864+16*w}'); e(f'ds_read_b32 v{40+w}, v7 offset:{36864+16*w+8}')
    e('v_lshlrev_b32 v8, 9, v5'); e('v_lshl_add_u32 v8, v6, 2, v8')
    for wg in range(32): e(f'ds_read_b32 v{48+wg}, v8 offset:{4096+1024*wg}')
    e('s_waitcnt lgkmcnt(0)')
    e('v_max_f32 v9, v32, v33')
    for w in range(2,8): e(f'v_max_f32 v9, v9, v{32+w}')
    for w in range(8):
        e(f'v_sub_f32 v{32+w}, v{32+w}, v9'); e(f'v_mul_f32 v{32+w}, s40, v{32+w}'); e(f'v_exp_f32 v{32+w}, v{32+w}')
    e('v_mov_b32 v10, 0'); e('v_mov_b32 v11, 0')
    for w in range(8):
        e(f'v_add_f32 v12, v{48+4*w}, v{49+4*w}'); e(f'v_add_f32 v13, v{50+4*w}, v{51+4*w}'); e('v_add_f32 v12, v12, v13')
        e(f'v_fmac_f32 v10, v{32+w}, v12'); e(f'v_fmac_f32 v11, v{32+w}, v{40+w}')
    e('v_mul_f32 v9, s40, v9')
    e('s_lshl_b32 s33, s30, 4'); e('s_add_u32 s33, s33, s31'); e('s_mul_i32 s33, s33, 528'); e(f's_add_u32 s33, s33, {PARTA}')
    e('v_mul_u32_u24 v12, 4224, v5'); e('v_lshl_add_u32 v12, v6, 2, v12')
    e('buffer_store_dword v10, v12, s[24:27], s33 offen')
    e('v_cmp_eq_u32 vcc, 0, v6'); e('s_and_saveexec_b64 s[44:45], vcc'); e('s_cbranch_execz K2_END')
    e('v_mov_b32 v10, v9')
    e('buffer_store_dwordx2 v[10:11], v12, s[24:27], s33 offen offset:512')
    e('s_endpgm')
    lab('K2_B')
    e('s_lshr_b32 s30, s2, 5'); e('s_and_b32 s31, s2, 31')
    e('s_lshl_b32 s32, s2, 17')
    e('v_lshlrev_b32 v5, 13, v1'); e('v_lshl_add_u32 v5, v2, 4, v5'); e('v_add_u32 v5, s32, v5')
    e('s_mov_b32 s34, 4096'); e('s_mov_b32 s35, 65536'); e('s_mov_b32 s36, 69632')
    for p in range(2):
        for i in range(8):
            so_=['0','s34'] if p==0 else ['s35','s36']
            e(f'buffer_load_dwordx4 v[{32+32*p+4*i}:{35+32*p+4*i}], v5, s[16:19], {so_[i>>2]} offen offset:{(i&3)*1024}')
    e('v_mul_u32_u24 v6, 8320, v1'); e('v_lshl_add_u32 v6, v2, 4, v6'); e(f'v_add_u32 v6, {CT}, v6')
    e('v_and_b32 v7, 1, v1'); e('v_lshrrev_b32 v8, 1, v1')
    e('v_lshl_add_u32 v9, v7, 4, v4'); e('v_lshlrev_b32 v9, 10, v9'); e('v_lshl_add_u32 v9, v3, 4, v9')
    e('s_lshl_b32 s37, s30, 15'); e(f's_add_u32 s37, s37, {QP}')
    e('v_lshl_add_u32 v10, v8, 4, v4'); e('v_mul_u32_u24 v10, 1040, v10'); e('v_lshl_add_u32 v10, v3, 4, v10'); e(f'v_add_u32 v10, {CT}, v10')
    e('v_lshlrev_b32 v11, 7, v8'); e('v_lshl_add_u32 v11, v7, 6, v11'); e('v_lshl_add_u32 v11, v3, 4, v11')
    e('v_lshlrev_b32 v16, 4, v3')
    e('v_lshl_add_u32 v17, v7, 2, v3'); e('v_mul_u32_u24 v17, 576, v17'); e('v_lshl_add_u32 v18, v8, 4, v4'); e('v_lshl_add_u32 v17, v18, 1, v17')
    e('v_mul_u32_u24 v18, 144, v4'); e('v_lshl_add_u32 v18, v3, 4, v18')
    e('v_lshrrev_b32 v19, 2, v4'); e('v_lshl_add_u32 v19, v3, 3, v19'); e('v_mul_u32_u24 v19, 1040, v19')
    e('v_and_b32 v20, 3, v4'); e('v_lshl_add_u32 v19, v20, 3, v19'); e('v_lshl_add_u32 v19, v1, 7, v19'); e(f'v_add_u32 v19, {CT}, v19')
    for k in range(8): e(f'v_mov_b32 v{20+k}, 0xff800000')
    for k in range(4): e(f'v_mov_b32 v{28+k}, 0')
    for k in range(32): e(f'v_mov_b32 v{96+k}, 0')
    for p in range(2):
        e(f's_waitcnt vmcnt({8 if p==0 else 0})')
        if p==1: e('s_barrier')
        for i in range(8): e(f'ds_write_b128 v6, v[{32+32*p+4*i}:{35+32*p+4*i}] offset:{i*1040}')
        e('s_waitcnt lgkmcnt(0)'); e('s_barrier')
        nb = 7 if p==0 else 15
        BF = 32+4*nb
        ks0=0
        while ks0<16:
            n=min(nb,16-ks0)
            for k in range(n):
                e(f'buffer_load_dwordx4 v[{32+4*k}:{35+4*k}], v9, s[24:27], s37 offen offset:{(ks0+k)*64}')
            for k in range(n):
                ks=ks0+k
                e(f'ds_read_b128 v[{BF}:{BF+3}], v10 offset:{ks*64}')
                e(f's_waitcnt vmcnt({n-1-k + (8 if False else 0)}) lgkmcnt(0)')
                c='0' if ks==0 else 'v[12:15]'
                e(f'v_mfma_f32_16x16x32_bf16 v[12:15], v[{32+4*k}:{35+4*k}], v[{BF}:{BF+3}], {c}')
                e('s_nop 3')
            ks0+=n
        e('s_nop 7'); e('s_nop 3')
        for r in range(4): e(f'v_mov_b32 v{32+r}, v{12+r}')
        rowred('v_max_f32',[32,33,34,35],None)
        e('s_nop 1')
        e(f'ds_write_b128 v11, v[32:35] offset:{SMAX}')
        e('s_waitcnt lgkmcnt(0)'); e('s_barrier')
        for mt in range(2):
            for nt in range(4):
                e(f'ds_read_b128 v[{32+16*mt+4*nt}:{35+16*mt+4*nt}], v16 offset:{SMAX+nt*128+mt*64}')
        e('s_waitcnt lgkmcnt(0)')
        for mt in range(2):
            for r in range(4):
                b0=32+16*mt+r
                e(f'v_max_f32 v{b0}, v{b0}, v{b0+4}'); e(f'v_max3_f32 v{b0}, v{b0}, v{b0+8}, v{b0+12}')
                e(f'v_max_f32 v{b0}, v{b0}, v{20+4*mt+r}')
                e(f'v_sub_f32 v{b0+4}, v{20+4*mt+r}, v{b0}'); e(f'v_mul_f32 v{b0+4}, s40, v{b0+4}'); e(f'v_exp_f32 v{b0+4}, v{b0+4}')
                e(f'v_mov_b32 v{20+4*mt+r}, v{b0}')
        e('v_cmp_eq_u32 vcc, 1, v7'); e('s_nop 1')
        for r in range(4):
            e(f'v_cndmask_b32 v{40+r}, v{20+r}, v{24+r}, vcc'); e(f'v_cndmask_b32 v{44+r}, v{36+r}, v{52+r}, vcc')
        for r in range(4):
            e(f'v_sub_f32 v{12+r}, v{12+r}, v{40+r}'); e(f'v_mul_f32 v{12+r}, s40, v{12+r}'); e(f'v_exp_f32 v{12+r}, v{12+r}')
        e('s_nop 0')
        for r in range(4):
            e(f'v_fma_f32 v{28+r}, v{28+r}, v{44+r}, v{12+r}')
            e(f'v_cvt_pk_bf16_f32 v{40+r}, v{12+r}, v{12+r}')
        for r in range(4): e(f'ds_write_b16 v17, v{40+r} offset:{PBUF+144*r}')
        for mt in range(2):
            for n in range(4):
                for r in range(4): e(f'v_mul_f32 v{96+(mt*4+n)*4+r}, v{36+16*mt+r}, v{96+(mt*4+n)*4+r}')
        e('s_waitcnt lgkmcnt(0)'); e('s_barrier')
        for mt in range(2):
            for ks in range(2):
                e(f'ds_read_b128 v[{32+(mt*2+ks)*4}:{35+(mt*2+ks)*4}], v18 offset:{PBUF+mt*2304+ks*64}')
        for n in range(4):
            for ks in range(2):
                r=48+ks*4
                e(f'ds_read_b64_tr_b16 v[{r}:{r+1}], v19 offset:{ks*32*1040+n*32}')
                e(f'ds_read_b64_tr_b16 v[{r+2}:{r+3}], v19 offset:{ks*32*1040+4*1040+n*32}')
            e('s_waitcnt lgkmcnt(0)')
            for ks in range(2):
                for mt in range(2):
                    a=96+(mt*4+n)*4
                    e(f'v_mfma_f32_16x16x32_bf16 v[{a}:{a+3}], v[{32+(mt*2+ks)*4}:{35+(mt*2+ks)*4}], v[{48+ks*4}:{51+ks*4}], v[{a}:{a+3}]')
            e('s_nop 3')
        e('s_nop 7'); e('s_nop 3')
    rowred('v_add_f32',[28,29,30,31],None)
    e('s_nop 1')
    e(f'ds_write_b128 v11, v[28:31] offset:{LSUM}')
    e('s_lshl_b32 s33, s30, 21'); e('s_lshl_b32 s38, s31, 11'); e('s_add_u32 s33, s33, s38'); e(f's_add_u32 s33, s33, {PARTB}')
    e('v_lshlrev_b32 v32, 18, v3'); e('v_lshl_add_u32 v32, v1, 8, v32'); e('v_lshl_add_u32 v32, v4, 2, v32')
    for mt in range(2):
        for r in range(4):
            e(f's_add_u32 s38, s33, {(mt*16+r)*65536}')
            for n in range(4):
                e(f'buffer_store_dword v{96+(mt*4+n)*4+r}, v32, s[24:27], s38 offen offset:{n*64}')
    e('s_waitcnt lgkmcnt(0)'); e('s_barrier')
    e('v_cmp_gt_u32 vcc, 2, v1'); e('s_and_saveexec_b64 s[42:43], vcc'); e('s_cbranch_execz K2_END')
    e('v_lshlrev_b32 v33, 6, v7'); e('v_lshl_add_u32 v33, v3, 4, v33')
    for nt in range(4): e(f'ds_read_b128 v[{40+4*nt}:{43+4*nt}], v33 offset:{LSUM+nt*128}')
    e('v_cmp_eq_u32 vcc, 1, v7'); e('s_nop 1')
    e('s_waitcnt lgkmcnt(0)')
    e('s_lshl_b32 s33, s30, 13'); e('s_lshl_b32 s38, s31, 3'); e('s_add_u32 s33, s33, s38'); e(f's_add_u32 s33, s33, {STATB}')
    e('v_lshl_add_u32 v34, v7, 2, v3'); e('v_lshlrev_b32 v34, 10, v34')
    for r in range(4):
        e(f'v_cndmask_b32 v36, v{20+r}, v{24+r}, vcc'); e('v_mul_f32 v36, s40, v36')
        e(f'v_add_f32 v37, v{40+r}, v{44+r}'); e(f'v_add_f32 v38, v{48+r}, v{52+r}'); e('v_add_f32 v37, v37, v38')
        e('s_mov_b64 s[44:45], exec'); e('v_cmp_eq_u32 s[46:47], 0, v4'); e('s_nop 1'); e('s_and_b64 exec, exec, s[46:47]')
        e(f'buffer_store_dwordx2 v[36:37], v34, s[24:27], s33 offen offset:{r*256}')
        e('s_nop 1'); e('s_mov_b64 exec, s[44:45]')
    lab('K2_END'); e('s_endpgm')
    kern.append(('k2_kernel',128,56))
BF=60

def outproj(wsrd):
    e('v_lshlrev_b32 v5, 3, v0')
    e('s_mov_b32 s34, s33')
    for i in range(8):
        e(f'buffer_load_dwordx2 v[{32+2*i}:{33+2*i}], v5, s[{wsrd}:{wsrd+3}], s34 offen'); e('s_add_u32 s34, s34, 4608')
    e('s_mov_b32 s35, 29826162'); e('v_mul_hi_u32 v6, v0, s35')
    e('v_mul_u32_u24 v7, 144, v6'); e('v_sub_u32 v7, v0, v7')
    e('v_lshlrev_b32 v8, 2, v6')
    for i in range(8):
        for b in range(2): e(f'ds_read_b32 v{48+2*i+b}, v8 offset:{b*128+i*16}')
    for k in range(8): e(f'v_mov_b32 v{16+k}, 0')
    e('s_waitcnt vmcnt(0) lgkmcnt(0)')
    for i in range(8):
        for j in range(2):
            e(f'v_lshlrev_b32 v10, 16, v{32+2*i+j}'); e(f'v_and_b32 v11, 0xffff0000, v{32+2*i+j}')
            for b in range(2):
                e(f'v_fmac_f32 v{16+4*b+2*j}, v{48+2*i+b}, v10'); e(f'v_fmac_f32 v{17+4*b+2*j}, v{48+2*i+b}, v11')
    e('v_mul_u32_u24 v9, 4608, v6'); e('v_lshl_add_u32 v9, v7, 4, v9')
    e('ds_write_b128 v9, v[16:19] offset:1024'); e('ds_write_b128 v9, v[20:23] offset:3328')
    e('s_waitcnt lgkmcnt(0)'); e('s_barrier')
    e('v_lshlrev_b32 v9, 3, v0')
    for g in range(4): e(f'ds_read_b64 v[{32+2*g}:{33+2*g}], v9 offset:{1024+4608*g}')
    e('s_waitcnt lgkmcnt(0)')
    for g in range(1,4): e(f'v_add_f32 v32, v32, v{32+2*g}'); e(f'v_add_f32 v33, v33, v{33+2*g}')
    e('s_mul_i32 s36, s2, 4608'); e(f's_add_u32 s36, s36, {OUTP}')
    e('buffer_store_dwordx2 v[32:33], v9, s[24:27], s36 offen')

def k3():
    begin('k3_kernel')
    e('s_cmp_ge_u32 s2, 256'); e('s_cbranch_scc1 K3_END')
    e('s_load_dwordx2 s[4:5], s[0:1], 32'); e('s_load_dwordx2 s[6:7], s[0:1], 72')
    e('s_load_dwordx2 s[20:21], s[0:1], 80'); e('s_load_dwordx2 s[22:23], s[0:1], 104')
    e('s_and_b32 s3, s2, 127'); e('s_lshr_b32 s30, s3, 2'); e('s_and_b32 s31, s3, 3')
    e('s_waitcnt lgkmcnt(0)')
    srd(8,4,4096*1152); srd(12,6,512*8192); srd(16,20,4096*1152); srd(24,22,WSSZ)
    e('s_mul_i32 s33, s3, 36864')
    e('s_cmp_ge_u32 s2, 128'); e('s_cbranch_scc1 K3_B')
    e('v_cmp_gt_u32 vcc, 64, v0'); e('s_and_saveexec_b64 s[42:43], vcc'); e('s_cbranch_execz K3_A1')
    e('v_lshrrev_b32 v1, 5, v0'); e('v_and_b32 v2, 31, v0')
    e('s_mul_i32 s34, s30, 4224'); e(f's_add_u32 s34, s34, {PARTA}')
    e('s_mov_b32 s35, 135168'); e('v_mul_lo_u32 v3, v1, s35')
    e('s_lshl_b32 s36, s31, 7'); e('v_lshl_add_u32 v4, v2, 2, v3'); e('v_add_u32 v4, s36, v4'); e('v_add_u32 v3, 0x200, v3')
    for s in range(8):
        e(f'buffer_load_dword v{32+s}, v4, s[24:27], s34 offen offset:{s*528}')
        e(f'buffer_load_dwordx2 v[{40+2*s}:{41+2*s}], v3, s[24:27], s34 offen offset:{s*528}')
    e('s_waitcnt vmcnt(0)')
    e('v_max_f32 v5, v40, v42')
    for s in range(2,8): e(f'v_max_f32 v5, v5, v{40+2*s}')
    e('v_mov_b32 v6, 0'); e('v_mov_b32 v7, 0')
    for s in range(8):
        e(f'v_sub_f32 v8, v{40+2*s}, v5'); e('v_exp_f32 v8, v8'); e('s_nop 0')
        e(f'v_fmac_f32 v6, v8, v{32+s}'); e(f'v_fmac_f32 v7, v8, v{41+2*s}')
    e('v_rcp_f32 v7, v7'); e('s_nop 0'); e('v_mul_f32 v6, v6, v7')
    e('v_cvt_pk_bf16_f32 v6, v6, v6'); e('v_lshlrev_b32 v6, 16, v6')
    e('v_lshlrev_b32 v8, 2, v0'); e('ds_write_b32 v8, v6')
    lab('K3_A1'); e('s_mov_b64 exec, s[42:43]')
    e('s_waitcnt lgkmcnt(0)'); e('s_barrier')
    outproj(8)
    e('s_endpgm')
    lab('K3_B')
    e('v_cmp_gt_u32 vcc, 64, v0'); e('s_and_saveexec_b64 s[42:43], vcc'); e('s_cbranch_execz K3_B1')
    e('v_lshrrev_b32 v1, 5, v0'); e('v_and_b32 v2, 31, v0')
    e('s_lshl_b32 s34, s30, 8'); e(f's_add_u32 s34, s34, {STATB}')
    e('v_lshlrev_b32 v3, 13, v1'); e('v_lshl_add_u32 v3, v2, 3, v3')
    e('buffer_load_dwordx2 v[4:5], v3, s[24:27], s34 offen')
    e('s_waitcnt vmcnt(0)')
    e('v_mov_b32 v6, v4')
    rowred('v_max_f32',[6],None)
    e('s_nop 1'); e('ds_swizzle_b32 v7, v6 offset:0x401F'); e('s_waitcnt lgkmcnt(0)'); e('v_max_f32 v6, v6, v7')
    e('v_sub_f32 v4, v4, v6'); e('v_exp_f32 v4, v4'); e('s_nop 0'); e('v_mul_f32 v5, v4, v5')
    rowred('v_add_f32',[5],None)
    e('s_nop 1'); e('ds_swizzle_b32 v7, v5 offset:0x401F'); e('s_waitcnt lgkmcnt(0)'); e('v_add_f32 v5, v5, v7')
    e('v_rcp_f32 v5, v5'); e('s_nop 0'); e('v_mul_f32 v4, v4, v5')
    e('v_lshlrev_b32 v8, 2, v0'); e('ds_write_b32 v8, v4 offset:20480')
    lab('K3_B1'); e('s_mov_b64 exec, s[42:43]')
    e('s_waitcnt lgkmcnt(0)'); e('s_barrier')
    e('v_cmp_gt_u32 vcc, 0x200, v0'); e('s_and_saveexec_b64 s[42:43], vcc'); e('s_cbranch_execz K3_B2')
    e('v_lshlrev_b32 v3, 2, v0')
    for b in range(2):
        e(f's_lshl_b32 s34, s30, 16'); e(f's_add_u32 s34, s34, {PARTB+b*2097152}')
        for s in range(32):
            e(f'buffer_load_dword v{32+32*b+s}, v3, s[24:27], s34 offen offset:{(s&1)*2048}')
            if s&1: e('s_add_u32 s34, s34, 4096')
    e('v_mov_b32 v4, 0')
    for b in range(2):
        e(f'v_mov_b32 v{8+b}, 0')
        for q in range(8): e(f'ds_read_b128 v[{96+4*q}:{99+4*q}], v4 offset:{20480+b*128+q*16}')
        e(f's_waitcnt vmcnt({32 if b==0 else 0}) lgkmcnt(0)')
        for s in range(32): e(f'v_fmac_f32 v{8+b}, v{96+s}, v{32+32*b+s}')
        e(f'ds_write_b32 v3, v{8+b} offset:{20736+b*2048}')
    e('s_waitcnt lgkmcnt(0)')
    lab('K3_B2'); e('s_mov_b64 exec, s[42:43]')
    e('s_barrier')
    e('v_cmp_gt_u32 vcc, 0x200, v0'); e('s_and_saveexec_b64 s[42:43], vcc'); e('s_cbranch_execz K3_B3')
    e('v_lshrrev_b32 v1, 2, v0'); e('v_and_b32 v2, 3, v0')
    e('s_lshl_b32 s34, s30, 8'); e('s_lshl_b32 s35, s31, 6'); e('s_add_u32 s34, s34, s35')
    e('v_lshlrev_b32 v3, 13, v1'); e('v_lshl_add_u32 v3, v2, 4, v3')
    for i in range(4):
        e(f'buffer_load_dwordx4 v[{32+4*i}:{35+4*i}], v3, s[12:15], s34 offen'); e('s_add_u32 s34, s34, 1048576')
    e('v_lshlrev_b32 v4, 2, v1')
    for i in range(4):
        for b in range(2): e(f'ds_read_b32 v{48+2*i+b}, v4 offset:{20736+b*2048+i*512}')
    for k in range(16): e(f'v_mov_b32 v{8+k}, 0')
    e('s_waitcnt vmcnt(0) lgkmcnt(0)')
    for i in range(4):
        for j in range(4):
            e(f'v_lshlrev_b32 v24, 16, v{32+4*i+j}'); e(f'v_and_b32 v25, 0xffff0000, v{32+4*i+j}')
            for b in range(2):
                e(f'v_fmac_f32 v{8+b*8+2*j}, v{48+2*i+b}, v24'); e(f'v_fmac_f32 v{8+b*8+2*j+1}, v{48+2*i+b}, v25')
    for ror in (4,8):
        e('s_nop 1')
        for k in range(16): e(f'v_add_f32_dpp v{8+k}, v{8+k}, v{8+k} row_ror:{ror}'+DPP)
    e('v_lshrrev_b32 v26, 4, v0'); e('v_lshlrev_b32 v26, 8, v26'); e('v_lshl_add_u32 v26, v2, 6, v26')
    e('v_and_b32 v27, 15, v0'); e('v_cmp_gt_u32 vcc, 4, v27'); e('s_and_b64 exec, exec, vcc')
    for k in range(4): e(f'ds_write_b128 v26, v[{8+4*k}:{11+4*k}] offset:{24832+16*k}')
    e('s_waitcnt lgkmcnt(0)')
    lab('K3_B3'); e('s_mov_b64 exec, s[42:43]')
    e('s_barrier')
    e('v_cmp_gt_u32 vcc, 64, v0'); e('s_and_saveexec_b64 s[42:43], vcc'); e('s_cbranch_execz K3_B4')
    e('v_lshlrev_b32 v26, 2, v0')
    for k in range(32): e(f'ds_read_b32 v{32+k}, v26 offset:{24832+256*k}')
    e('s_waitcnt lgkmcnt(0)')
    for k in range(1,32): e(f'v_add_f32 v32, v32, v{32+k}')
    e('v_cvt_pk_bf16_f32 v32, v32, v32'); e('v_lshlrev_b32 v32, 16, v32')
    e('v_lshrrev_b32 v3, 4, v0'); e('v_lshlrev_b32 v3, 5, v3'); e('v_and_b32 v4, 7, v0'); e('v_lshl_add_u32 v3, v4, 2, v3')
    e('v_bfe_u32 v4, v0, 3, 1'); e('v_lshl_add_u32 v3, v4, 7, v3')
    e('ds_write_b32 v3, v32'); e('s_waitcnt lgkmcnt(0)')
    lab('K3_B4'); e('s_mov_b64 exec, s[42:43]')
    e('s_barrier')
    outproj(16)
    lab('K3_END'); e('s_endpgm')
    kern.append(('k3_kernel',128,56))

def k4():
    begin('k4_kernel')
    e('s_cmp_ge_u32 s2, 36'); e('s_cbranch_scc1 K4_END')
    e('s_load_dwordx2 s[4:5], s[0:1], 88'); e('s_load_dwordx2 s[6:7], s[0:1], 104')
    e('v_lshrrev_b32 v1, 6, v0'); e('v_and_b32 v2, 63, v0')
    e('s_waitcnt lgkmcnt(0)')
    srd(8,4,4608); srd(12,6,WSSZ)
    e('s_cmp_ge_u32 s2, 18'); e('s_cselect_b32 s30, 1, 0')
    e('s_mul_i32 s31, s30, 18'); e('s_sub_u32 s31, s2, s31'); e('s_lshl_b32 s31, s31, 6')
    e('v_add_u32 v3, s31, v2')
    e('s_mul_i32 s32, s30, 589824'); e(f's_add_u32 s32, s32, {OUTP}')
    e('v_mul_u32_u24 v4, 147456, v1') if False else None
    e('s_mov_b32 s33, 147456'); e('v_mul_lo_u32 v4, v1, s33'); e('v_lshl_add_u32 v4, v3, 2, v4')
    for k in range(32):
        e(f'buffer_load_dword v{32+k}, v4, s[12:15], s32 offen'); e('s_add_u32 s32, s32, 4608')
    e('s_waitcnt vmcnt(0)')
    for k in range(1,32): e(f'v_add_f32 v32, v32, v{32+k}')
    e('v_lshlrev_b32 v5, 2, v0'); e('ds_write_b32 v5, v32'); e('s_waitcnt lgkmcnt(0)'); e('s_barrier')
    e('v_cmp_gt_u32 vcc, 64, v0'); e('s_and_saveexec_b64 s[42:43], vcc'); e('s_cbranch_execz K4_END')
    for w in range(4): e(f'ds_read_b32 v{32+w}, v5 offset:{256*w}')
    e('s_waitcnt lgkmcnt(0)')
    e('v_add_f32 v32, v32, v33'); e('v_add_f32 v34, v34, v35'); e('v_add_f32 v32, v32, v34')
    e('v_cvt_pk_bf16_f32 v32, v32, v32')
    e('v_cmp_le_u32 vcc, 0x240, v3'); e('v_mov_b32 v6, 0x240'); e('s_nop 1'); e('v_cndmask_b32 v6, 0, v6, vcc')
    e('v_add_u32 v6, v6, v3'); e('s_mul_i32 s34, s30, 576'); e('v_add_u32 v6, s34, v6'); e('v_lshlrev_b32 v6, 1, v6')
    e('buffer_store_short v32, v6, s[8:11], 0 offen')
    lab('K4_END'); e('s_endpgm')
    kern.append(('k4_kernel',64,48))

BF=60
hdr=open('concat_heads__gqa_block_cached__compressed_kv_cla__decode.s.ref').read().split('\n')
hdr=[h for h in hdr if h.startswith(';') and '@launch' not in h and not h.startswith('; Override') and not h.startswith('; grid=ceil')]
L+=hdr
L+=['; @launch kernel=k1_kernel grid=(256,1,1) block=(256,1,1) lds=4096',
    '; @launch kernel=k1b_kernel grid=(256,1,1) block=(256,1,1) lds=0',
    '; @launch kernel=k2_kernel grid=(320,1,1) block=(512,1,1) lds=73728',
    '; @launch kernel=k3_kernel grid=(256,1,1) block=(576,1,1) lds=33792',
    '; @launch kernel=k4_kernel grid=(36,1,1) block=(256,1,1) lds=1024',
    '.amdgcn_target "amdgcn-amd-amdhsa--gfx950"','.text']
import sys
k1(); k1b(); k2(); k3(); k4()
L.append('.section .rodata,"a"')
for n,v,s in kern:
    L+=['.p2align 6',f'.amdhsa_kernel {n}',f'  .amdhsa_next_free_vgpr {v}',f'  .amdhsa_next_free_sgpr {s}',f'  .amdhsa_accum_offset {v}',
        '  .amdhsa_group_segment_fixed_size 0','  .amdhsa_kernarg_size 112','  .amdhsa_user_sgpr_count 2','  .amdhsa_user_sgpr_kernarg_segment_ptr 1',
        '  .amdhsa_system_sgpr_workgroup_id_x 1','.end_amdhsa_kernel']
open(OUT,'w').write('\n'.join(x for x in L if x is not None)+'\n')
```

```python
import struct, os
MODE=os.environ.get('K2MODE','')
OUT=os.environ.get('OUTF','')or'concat_heads__gqa_block_cached__compressed_kv_cla__decode.s'
L=[]
NT=os.environ.get('NT','1')=='1'
cur=['']
def e(s):
    if NT and s.startswith('buffer_load_dwordx'):
        k=cur[0]
        big={'k1_kernel':['s[12:15]'],'k1b_kernel':['s[8:11]'],'k2_kernel':['s[8:11]','s[12:15]','s[16:19]'],'k3_kernel':['s[8:11]','s[12:15]','s[16:19]']}
        if any(x in s for x in big.get(k,[])): s+=' nt'
    L.append('    '+s)
def lab(s): L.append(s+':')
def f32(x): return '0x%08x'%struct.unpack('<I',struct.pack('<f',x))[0]
CS=f32(1.4426950408889634/(128**0.5))
QA=0; QB=16384; QP=32768; PARTA=98304; STATB=368640; PARTB=393216; OUTP=4587520
WSSZ=8*1024*1024
DPP=' row_mask:0xf bank_mask:0xf'
kern=[]
def begin(name):
    cur[0]=name
    L.append('.globl %s'%name); L.append('.p2align 8'); L.append('.type %s,@function'%name); lab(name)
def srd(d, lo, size):
    e(f's_mov_b32 s{d}, s{lo}'); e(f's_and_b32 s{d+1}, s{lo+1}, 0xffff'); e(f's_mov_b32 s{d+2}, {size}'); e(f's_mov_b32 s{d+3}, 0x00020000')
def rowred(op, regs, tmp):
    for ror in (8,4,2,1):
        e('s_nop 1')
        for r in regs:
            e(f'{op}_dpp v{r}, v{r}, v{r} row_ror:{ror}'+DPP)

def k1():
    begin('k1_kernel')
    e('s_cmp_ge_u32 s2, 256'); e('s_cbranch_scc1 K1_END')
    e('s_load_dwordx2 s[4:5], s[0:1], 0'); e('s_load_dwordx2 s[6:7], s[0:1], 40')
    e('s_load_dwordx2 s[20:21], s[0:1], 24'); e('s_load_dwordx2 s[22:23], s[0:1], 56')
    e('s_load_dwordx2 s[24:25], s[0:1], 104')
    e('s_lshr_b32 s3, s2, 7')
    e('s_and_b32 s26, s2, 127')
    e('v_lshrrev_b32 v1, 6, v0'); e('v_and_b32 v2, 63, v0')
    e('v_lshrrev_b32 v3, 2, v2'); e('v_lshl_add_u32 v3, v1, 4, v3')
    e('v_and_b32 v4, 3, v2')
    e('s_waitcnt lgkmcnt(0)')
    e('s_cmp_eq_u32 s3, 0')
    e('s_cselect_b64 s[4:5], s[4:5], s[6:7]'); e('s_cselect_b64 s[20:21], s[20:21], s[22:23]')
    srd(8,4,2304); srd(12,20,576*8192); srd(16,24,WSSZ)
    e('s_lshl_b32 s27, s26, 6')
    e('v_lshlrev_b32 v5, 13, v3'); e('v_lshl_add_u32 v5, v4, 4, v5'); e('v_add_u32 v5, s27, v5')
    e('v_lshlrev_b32 v6, 1, v3')
    e('s_mov_b32 s28, 0')
    for i in range(9):
        e(f'buffer_load_dwordx4 v[{32+4*i}:{35+4*i}], v5, s[12:15], s28 offen')
        e('s_add_u32 s28, s28, 524288')
    for i in range(9):
        for b in range(2):
            e(f'buffer_load_ushort v{68+2*i+b}, v6, s[8:11], 0 offen offset:{b*1152+i*128}')
    for k in range(16): e(f'v_mov_b32 v{8+k}, 0')
    e('s_waitcnt vmcnt(0)')
    for i in range(18): e(f'v_lshlrev_b32 v{68+i}, 16, v{68+i}')
    for i in range(9):
        for j in range(4):
            e(f'v_lshlrev_b32 v24, 16, v{32+4*i+j}'); e(f'v_and_b32 v25, 0xffff0000, v{32+4*i+j}')
            for b in range(2):
                e(f'v_fmac_f32 v{8+b*8+2*j}, v{68+2*i+b}, v24'); e(f'v_fmac_f32 v{8+b*8+2*j+1}, v{68+2*i+b}, v25')
    for ror in (4,8):
        e('s_nop 1')
        for k in range(16): e(f'v_add_f32_dpp v{8+k}, v{8+k}, v{8+k} row_ror:{ror}'+DPP)
    e('v_lshrrev_b32 v26, 4, v2'); e('v_lshl_add_u32 v26, v1, 2, v26'); e('v_lshlrev_b32 v26, 8, v26'); e('v_lshl_add_u32 v26, v4, 6, v26')
    e('v_and_b32 v27, 15, v2'); e('v_cmp_gt_u32 vcc, 4, v27'); e('s_and_saveexec_b64 s[30:31], vcc')
    for k in range(4): e(f'ds_write_b128 v26, v[{8+4*k}:{11+4*k}] offset:{16*k}')
    e('s_mov_b64 exec, s[30:31]')
    e('s_waitcnt lgkmcnt(0)'); e('s_barrier')
    e('v_cmp_gt_u32 vcc, 64, v0'); e('s_and_saveexec_b64 s[30:31], vcc'); e('s_cbranch_execz K1_END')
    e('v_lshlrev_b32 v26, 2, v0')
    for k in range(16): e(f'ds_read_b32 v{32+k}, v26 offset:{256*k}')
    e('s_waitcnt lgkmcnt(0)')
    for k in range(1,16): e(f'v_add_f32 v32, v32, v{32+k}')
    e('v_cvt_pk_bf16_f32 v32, v32, v32')
    e('v_lshrrev_b32 v3, 4, v0'); e('v_lshlrev_b32 v3, 4, v3'); e('v_and_b32 v4, 7, v0'); e('v_lshl_add_u32 v3, v4, 1, v3')
    e('v_bfe_u32 v4, v0, 3, 1'); e('v_lshl_add_u32 v3, v4, 13, v3')
    e('s_lshl_b32 s29, s3, 14'); e('s_add_u32 s29, s29, s27'); e('v_add_u32 v3, s29, v3')
    e('buffer_store_short v32, v3, s[16:19], 0 offen')
    lab('K1_END'); e('s_endpgm')
    kern.append(('k1_kernel',96,40))

def k1b():
    begin('k1b_kernel')
    e('s_cmp_ge_u32 s2, 256'); e('s_cbranch_scc1 K1B_END')
    e('s_load_dwordx2 s[4:5], s[0:1], 64'); e('s_load_dwordx2 s[6:7], s[0:1], 104')
    e('s_lshr_b32 s3, s2, 3'); e('s_and_b32 s26, s2, 7')
    e('v_lshrrev_b32 v1, 6, v0'); e('v_and_b32 v2, 63, v0'); e('v_lshrrev_b32 v3, 4, v2'); e('v_and_b32 v4, 15, v2')
    e('s_waitcnt lgkmcnt(0)')
    srd(8,4,512*8192); srd(12,6,WSSZ)
    e('s_lshl_b32 s27, s26, 6')
    e('v_lshl_add_u32 v5, v1, 4, v3'); e('v_add_u32 v5, s27, v5')
    e('s_lshl_b32 s28, s3, 8')
    e('v_lshlrev_b32 v6, 13, v5'); e('v_lshl_add_u32 v6, v4, 4, v6'); e('v_add_u32 v6, s28, v6')
    e('v_lshlrev_b32 v7, 4, v4'); e('v_add_u32 v7, s28, v7')
    e(f'buffer_load_dwordx4 v[16:19], v7, s[12:15], 0 offen offset:0') if False else None
    e(f's_mov_b32 s29, {QB}'); e(f's_mov_b32 s30, {QB+8192}')
    e('buffer_load_dwordx4 v[16:19], v7, s[12:15], s29 offen'); e('buffer_load_dwordx4 v[20:23], v7, s[12:15], s30 offen')
    e('s_mov_b32 s29, 0')
    for i in range(4):
        e(f'buffer_load_dwordx4 v[{32+4*i}:{35+4*i}], v6, s[8:11], s29 offen'); e('s_add_u32 s29, s29, 32768')
    for k in range(8): e(f'v_mov_b32 v{8+k}, 0')
    e('s_waitcnt vmcnt(0)')
    for k in range(4):
        for i in range(4):
            for b in range(2):
                e(f'v_dot2_f32_bf16 v{8+2*i+b}, v{32+4*i+k}, v{16+4*b+k}, v{8+2*i+b}')
    e('s_nop 3')
    rowred('v_add_f32', range(8,16), None)
    e('s_nop 1')
    e('s_lshl_b32 s28, s3, 10'); e(f's_add_u32 s28, s28, {QP}')
    e('v_lshlrev_b32 v6, 1, v5'); e('v_add_u32 v6, s28, v6')
    e('v_cmp_eq_u32 vcc, 0, v4'); e('s_and_saveexec_b64 s[30:31], vcc')
    for i in range(4):
        for b in range(2):
            e(f'v_cvt_pk_bf16_f32 v{8+2*i+b}, v{8+2*i+b}, v{8+2*i+b}')
    for i in range(4):
        for b in range(2):
            e(f's_mov_b32 s29, {b*32768}')
            e(f'buffer_store_short v{8+2*i+b}, v6, s[12:15], s29 offen offset:{i*8}')
    lab('K1B_END'); e('s_endpgm')
    kern.append(('k1b_kernel',48,40))

PBUF=0; SMAX=4608; LSUM=5120; CT=5632
def k2():
    begin('k2_kernel')
    e('s_cmp_ge_u32 s2, 320'); e('s_cbranch_scc1 K2_END')
    e('s_load_dwordx2 s[4:5], s[0:1], 8'); e('s_load_dwordx2 s[6:7], s[0:1], 16')
    e('s_load_dwordx2 s[20:21], s[0:1], 48'); e('s_load_dwordx2 s[22:23], s[0:1], 104')
    e('v_lshrrev_b32 v1, 6, v0'); e('v_and_b32 v2, 63, v0'); e('v_lshrrev_b32 v3, 4, v2'); e('v_and_b32 v4, 15, v2')
    e(f's_mov_b32 s40, {CS}')
    e('s_waitcnt lgkmcnt(0)')
    srd(8,4,2*16*4096*256); srd(12,6,2*16*4096*256); srd(16,20,2*4096*1024); srd(24,22,WSSZ)
    e('s_cmp_lt_u32 s2, 64'); e('s_cbranch_scc1 '+('K2_END' if MODE=='A' else 'K2_B'))
    if MODE=='B': e('s_branch K2_END')
    e('s_sub_u32 s3, s2, 64')
    e('s_lshr_b32 s30, s3, 3'); e('s_and_b32 s31, s3, 7')
    e('s_lshl_b32 s32, s30, 20'); e('s_lshl_b32 s33, s31, 17'); e('s_add_u32 s32, s32, s33')
    e('v_lshlrev_b32 v5, 14, v1'); e('v_add_u32 v5, s32, v5')
    e('v_lshl_add_u32 v6, v4, 8, v5'); e('v_lshl_add_u32 v6, v3, 4, v6')
    e('v_lshl_add_u32 v7, v2, 4, v5')
    e('s_lshl_b32 s33, s30, 9')
    e('v_lshlrev_b32 v8, 8, v4'); e('v_lshl_add_u32 v8, v3, 4, v8'); e('v_add_u32 v8, s33, v8')
    e('v_cmp_gt_u32 vcc, 2, v4'); e('v_mov_b32 v9, 0x7fffff00'); e('s_nop 1'); e('v_cndmask_b32 v8, v9, v8, vcc')
    for ks in range(4): e(f'buffer_load_dwordx4 v[{16+4*ks}:{19+4*ks}], v8, s[24:27], 0 offen offset:{QA+ks*64}')
    e('s_mov_b32 s34, 4096'); e('s_mov_b32 s35, 8192'); e('s_mov_b32 s36, 12288')
    so=['0','s34','s35','s36']
    for t in range(4):
        for ks in range(4):
            r=32+16*t+4*ks
            e(f'buffer_load_dwordx4 v[{r}:{r+3}], v6, s[8:11], {so[t]} offen offset:{ks*64}')
    for i in range(4):
        e(f'buffer_load_dwordx4 v[{96+4*i}:{99+4*i}], v7, s[12:15], 0 offen offset:{i*1024}')
    for t in range(4):
        e('s_waitcnt vmcnt(16)')
        for ks in range(4):
            r=32+16*t+4*ks
            c='0' if ks==0 else f'v[{112+4*t}:{115+4*t}]'
            e(f'v_mfma_f32_16x16x32_bf16 v[{112+4*t}:{115+4*t}], v[{16+4*ks}:{19+4*ks}], v[{r}:{r+3}], {c}')
        if t<3:
            for i in range(4):
                r=32+16*t+4*i
                e(f'buffer_load_dwordx4 v[{r}:{r+3}], v7, s[12:15], {so[t+1]} offen offset:{i*1024}')
    e('s_nop 7'); e('s_nop 3')
    for h in range(2):
        e(f'v_max_f32 v{10+h}, v{112+h}, v{116+h}'); e(f'v_max3_f32 v{10+h}, v{10+h}, v{120+h}, v{124+h}')
    rowred('v_max_f32',[10,11],None)
    e('s_nop 1')
    for h in range(2):
        for t in range(4):
            e(f'v_sub_f32 v{112+4*t+h}, v{112+4*t+h}, v{10+h}'); e(f'v_mul_f32 v{112+4*t+h}, s40, v{112+4*t+h}')
    for h in range(2):
        for t in range(4): e(f'v_exp_f32 v{112+4*t+h}, v{112+4*t+h}')
    e('s_nop 0')
    for h in range(2):
        e(f'v_add_f32 v{12+h}, v{112+h}, v{116+h}'); e(f'v_add_f32 v{14}, v{120+h}, v{124+h}'); e(f'v_add_f32 v{12+h}, v{12+h}, v14')
    rowred('v_add_f32',[12,13],None)
    e('v_lshlrev_b32 v14, 9, v1'); e('v_lshl_add_u32 v14, v2, 3, v14')
    e('v_cmp_gt_u32 vcc, 16, v2'); e('s_and_saveexec_b64 s[42:43], vcc')
    for t in range(4): e(f'ds_write_b64 v14, v[{112+4*t}:{113+4*t}] offset:{t*128}')
    e('v_lshlrev_b32 v15, 4, v1'); e(f'ds_write_b128 v15, v[10:13] offset:36864')
    e('s_mov_b64 exec, s[42:43]')
    for k in range(16): e(f'v_mov_b32 v{16+k}, 0')
    e('s_waitcnt lgkmcnt(0)')
    e('v_lshlrev_b32 v14, 9, v1'); e('v_lshl_add_u32 v14, v3, 3, v14')
    for i in range(16): e(f'ds_read_b64 v[{80+2*(i%8)}:{81+2*(i%8)}], v14 offset:{i*32}') if i<8 else None
    for i in range(16):
        if i==8:
            for ii in range(8,16): e(f'ds_read_b64 v[{112+2*(ii-8)}:{113+2*(ii-8)}], v14 offset:{ii*32}')
        pr = 80+2*i if i<8 else 112+2*(i-8)
        vr = 96+4*i if i<4 else 32+4*(i-4)
        e(f's_waitcnt vmcnt({15-i}) lgkmcnt({7-i if i<8 else 15-i})')
        for j in range(4):
            e(f'v_lshlrev_b32 v8, 16, v{vr+j}'); e(f'v_and_b32 v9, 0xffff0000, v{vr+j}')
            e(f'v_pk_fma_f32 v[{16+2*j}:{17+2*j}], v[8:9], v[{pr}:{pr+1}], v[{16+2*j}:{17+2*j}] op_sel:[0,0,0] op_sel_hi:[1,0,1]')
            e(f'v_pk_fma_f32 v[{24+2*j}:{25+2*j}], v[8:9], v[{pr}:{pr+1}], v[{24+2*j}:{25+2*j}] op_sel:[0,1,0] op_sel_hi:[1,1,1]')
    e('v_lshl_add_u32 v14, v1, 2, v3'); e('v_lshlrev_b32 v14, 10, v14'); e('v_lshl_add_u32 v14, v4, 5, v14')
    for h in range(2):
        e(f'ds_write_b128 v14, v[{16+8*h}:{19+8*h}] offset:{4096+512*h}'); e(f'ds_write_b128 v14, v[{20+8*h}:{23+8*h}] offset:{4096+512*h+16}')
    e('s_waitcnt lgkmcnt(0)'); e('s_barrier')
    e('v_cmp_gt_u32 vcc, 256, v0'); e('s_and_saveexec_b64 s[42:43], vcc'); e('s_cbranch_execz K2_END')
    e('v_lshrrev_b32 v5, 7, v0'); e('v_and_b32 v6, 127, v0')
    e('v_lshlrev_b32 v7, 2, v5')
    for w in range(8):
        e(f'ds_read_b32 v{32+w}, v7 offset:{36864+16*w}'); e(f'ds_read_b32 v{40+w}, v7 offset:{36864+16*w+8}')
    e('v_lshlrev_b32 v8, 9, v5'); e('v_lshl_add_u32 v8, v6, 2, v8')
    for wg in range(32): e(f'ds_read_b32 v{48+wg}, v8 offset:{4096+1024*wg}')
    e('s_waitcnt lgkmcnt(0)')
    e('v_max_f32 v9, v32, v33')
    for w in range(2,8): e(f'v_max_f32 v9, v9, v{32+w}')
    for w in range(8):
        e(f'v_sub_f32 v{32+w}, v{32+w}, v9'); e(f'v_mul_f32 v{32+w}, s40, v{32+w}'); e(f'v_exp_f32 v{32+w}, v{32+w}')
    e('v_mov_b32 v10, 0'); e('v_mov_b32 v11, 0')
    for w in range(8):
        e(f'v_add_f32 v12, v{48+4*w}, v{49+4*w}'); e(f'v_add_f32 v13, v{50+4*w}, v{51+4*w}'); e('v_add_f32 v12, v12, v13')
        e(f'v_fmac_f32 v10, v{32+w}, v12'); e(f'v_fmac_f32 v11, v{32+w}, v{40+w}')
    e('v_mul_f32 v9, s40, v9')
    e('s_lshl_b32 s33, s30, 4'); e('s_add_u32 s33, s33, s31'); e('s_mul_i32 s33, s33, 528'); e(f's_add_u32 s33, s33, {PARTA}')
    e('v_mul_u32_u24 v12, 4224, v5'); e('v_lshl_add_u32 v12, v6, 2, v12')
    e('buffer_store_dword v10, v12, s[24:27], s33 offen')
    e('v_cmp_eq_u32 vcc, 0, v6'); e('s_and_saveexec_b64 s[44:45], vcc'); e('s_cbranch_execz K2_END')
    e('v_mov_b32 v10, v9')
    e('buffer_store_dwordx2 v[10:11], v12, s[24:27], s33 offen offset:512')
    e('s_endpgm')
    lab('K2_B')
    e('s_lshr_b32 s30, s2, 5'); e('s_and_b32 s31, s2, 31')
    e('s_lshl_b32 s32, s2, 17')
    e('v_lshlrev_b32 v5, 13, v1'); e('v_lshl_add_u32 v5, v2, 4, v5'); e('v_add_u32 v5, s32, v5')
    e('s_mov_b32 s34, 4096'); e('s_mov_b32 s35, 65536'); e('s_mov_b32 s36, 69632')
    for p in range(2):
        for i in range(8):
            so_=['0','s34'] if p==0 else ['s35','s36']
            e(f'buffer_load_dwordx4 v[{32+32*p+4*i}:{35+32*p+4*i}], v5, s[16:19], {so_[i>>2]} offen offset:{(i&3)*1024}')
    e('v_mul_u32_u24 v6, 8320, v1'); e('v_lshl_add_u32 v6, v2, 4, v6'); e(f'v_add_u32 v6, {CT}, v6')
    e('v_and_b32 v7, 1, v1'); e('v_lshrrev_b32 v8, 1, v1')
    e('v_lshl_add_u32 v9, v7, 4, v4'); e('v_lshlrev_b32 v9, 10, v9'); e('v_lshl_add_u32 v9, v3, 4, v9')
    e('s_lshl_b32 s37, s30, 15'); e(f's_add_u32 s37, s37, {QP}')
    e('v_lshl_add_u32 v10, v8, 4, v4'); e('v_mul_u32_u24 v10, 1040, v10'); e('v_lshl_add_u32 v10, v3, 4, v10'); e(f'v_add_u32 v10, {CT}, v10')
    e('v_lshlrev_b32 v11, 7, v8'); e('v_lshl_add_u32 v11, v7, 6, v11'); e('v_lshl_add_u32 v11, v3, 4, v11')
    e('v_lshlrev_b32 v16, 4, v3')
    e('v_lshl_add_u32 v17, v7, 2, v3'); e('v_mul_u32_u24 v17, 576, v17'); e('v_lshl_add_u32 v18, v8, 4, v4'); e('v_lshl_add_u32 v17, v18, 1, v17')
    e('v_mul_u32_u24 v18, 144, v4'); e('v_lshl_add_u32 v18, v3, 4, v18')
    e('v_lshrrev_b32 v19, 2, v4'); e('v_lshl_add_u32 v19, v3, 3, v19'); e('v_mul_u32_u24 v19, 1040, v19')
    e('v_and_b32 v20, 3, v4'); e('v_lshl_add_u32 v19, v20, 3, v19'); e('v_lshl_add_u32 v19, v1, 7, v19'); e(f'v_add_u32 v19, {CT}, v19')
    for k in range(8): e(f'v_mov_b32 v{20+k}, 0xff800000')
    for k in range(4): e(f'v_mov_b32 v{28+k}, 0')
    for k in range(32): e(f'v_mov_b32 v{96+k}, 0')
    for p in range(2):
        e(f's_waitcnt vmcnt({8 if p==0 else 0})')
        if p==1: e('s_barrier')
        for i in range(8): e(f'ds_write_b128 v6, v[{32+32*p+4*i}:{35+32*p+4*i}] offset:{i*1040}')
        e('s_waitcnt lgkmcnt(0)'); e('s_barrier')
        nb = 7 if p==0 else 15
        BF = 32+4*nb
        ks0=0
        while ks0<16:
            n=min(nb,16-ks0)
            for k in range(n):
                e(f'buffer_load_dwordx4 v[{32+4*k}:{35+4*k}], v9, s[24:27], s37 offen offset:{(ks0+k)*64}')
            for k in range(n):
                ks=ks0+k
                e(f'ds_read_b128 v[{BF}:{BF+3}], v10 offset:{ks*64}')
                e(f's_waitcnt vmcnt({n-1-k + (8 if False else 0)}) lgkmcnt(0)')
                c='0' if ks==0 else 'v[12:15]'
                e(f'v_mfma_f32_16x16x32_bf16 v[12:15], v[{32+4*k}:{35+4*k}], v[{BF}:{BF+3}], {c}')
                e('s_nop 3')
            ks0+=n
        e('s_nop 7'); e('s_nop 3')
        for r in range(4): e(f'v_mov_b32 v{32+r}, v{12+r}')
        rowred('v_max_f32',[32,33,34,35],None)
        e('s_nop 1')
        e(f'ds_write_b128 v11, v[32:35] offset:{SMAX}')
        e('s_waitcnt lgkmcnt(0)'); e('s_barrier')
        for mt in range(2):
            for nt in range(4):
                e(f'ds_read_b128 v[{32+16*mt+4*nt}:{35+16*mt+4*nt}], v16 offset:{SMAX+nt*128+mt*64}')
        e('s_waitcnt lgkmcnt(0)')
        for mt in range(2):
            for r in range(4):
                b0=32+16*mt+r
                e(f'v_max_f32 v{b0}, v{b0}, v{b0+4}'); e(f'v_max3_f32 v{b0}, v{b0}, v{b0+8}, v{b0+12}')
                e(f'v_max_f32 v{b0}, v{b0}, v{20+4*mt+r}')
                e(f'v_sub_f32 v{b0+4}, v{20+4*mt+r}, v{b0}'); e(f'v_mul_f32 v{b0+4}, s40, v{b0+4}'); e(f'v_exp_f32 v{b0+4}, v{b0+4}')
                e(f'v_mov_b32 v{20+4*mt+r}, v{b0}')
        e('v_cmp_eq_u32 vcc, 1, v7'); e('s_nop 1')
        for r in range(4):
            e(f'v_cndmask_b32 v{40+r}, v{20+r}, v{24+r}, vcc'); e(f'v_cndmask_b32 v{44+r}, v{36+r}, v{52+r}, vcc')
        for r in range(4):
            e(f'v_sub_f32 v{12+r}, v{12+r}, v{40+r}'); e(f'v_mul_f32 v{12+r}, s40, v{12+r}'); e(f'v_exp_f32 v{12+r}, v{12+r}')
        e('s_nop 0')
        for r in range(4):
            e(f'v_fma_f32 v{28+r}, v{28+r}, v{44+r}, v{12+r}')
            e(f'v_cvt_pk_bf16_f32 v{40+r}, v{12+r}, v{12+r}')
        for r in range(4): e(f'ds_write_b16 v17, v{40+r} offset:{PBUF+144*r}')
        for mt in range(2):
            for n in range(4):
                for r in range(4): e(f'v_mul_f32 v{96+(mt*4+n)*4+r}, v{36+16*mt+r}, v{96+(mt*4+n)*4+r}')
        e('s_waitcnt lgkmcnt(0)'); e('s_barrier')
        for mt in range(2):
            for ks in range(2):
                e(f'ds_read_b128 v[{32+(mt*2+ks)*4}:{35+(mt*2+ks)*4}], v18 offset:{PBUF+mt*2304+ks*64}')
        for n in range(4):
            for ks in range(2):
                r=48+ks*4
                e(f'ds_read_b64_tr_b16 v[{r}:{r+1}], v19 offset:{ks*32*1040+n*32}')
                e(f'ds_read_b64_tr_b16 v[{r+2}:{r+3}], v19 offset:{ks*32*1040+4*1040+n*32}')
            e('s_waitcnt lgkmcnt(0)')
            for ks in range(2):
                for mt in range(2):
                    a=96+(mt*4+n)*4
                    e(f'v_mfma_f32_16x16x32_bf16 v[{a}:{a+3}], v[{32+(mt*2+ks)*4}:{35+(mt*2+ks)*4}], v[{48+ks*4}:{51+ks*4}], v[{a}:{a+3}]')
            e('s_nop 3')
        e('s_nop 7'); e('s_nop 3')
    rowred('v_add_f32',[28,29,30,31],None)
    e('s_nop 1')
    e(f'ds_write_b128 v11, v[28:31] offset:{LSUM}')
    e('s_lshl_b32 s33, s30, 21'); e('s_lshl_b32 s38, s31, 11'); e('s_add_u32 s33, s33, s38'); e(f's_add_u32 s33, s33, {PARTB}')
    e('v_lshlrev_b32 v32, 18, v3'); e('v_lshl_add_u32 v32, v1, 8, v32'); e('v_lshl_add_u32 v32, v4, 2, v32')
    for mt in range(2):
        for r in range(4):
            e(f's_add_u32 s38, s33, {(mt*16+r)*65536}')
            for n in range(4):
                e(f'buffer_store_dword v{96+(mt*4+n)*4+r}, v32, s[24:27], s38 offen offset:{n*64}')
    e('s_waitcnt lgkmcnt(0)'); e('s_barrier')
    e('v_cmp_gt_u32 vcc, 2, v1'); e('s_and_saveexec_b64 s[42:43], vcc'); e('s_cbranch_execz K2_END')
    e('v_lshlrev_b32 v33, 6, v7'); e('v_lshl_add_u32 v33, v3, 4, v33')
    for nt in range(4): e(f'ds_read_b128 v[{40+4*nt}:{43+4*nt}], v33 offset:{LSUM+nt*128}')
    e('v_cmp_eq_u32 vcc, 1, v7'); e('s_nop 1')
    e('s_waitcnt lgkmcnt(0)')
    e('s_lshl_b32 s33, s30, 13'); e('s_lshl_b32 s38, s31, 3'); e('s_add_u32 s33, s33, s38'); e(f's_add_u32 s33, s33, {STATB}')
    e('v_lshl_add_u32 v34, v7, 2, v3'); e('v_lshlrev_b32 v34, 10, v34')
    for r in range(4):
        e(f'v_cndmask_b32 v36, v{20+r}, v{24+r}, vcc'); e('v_mul_f32 v36, s40, v36')
        e(f'v_add_f32 v37, v{40+r}, v{44+r}'); e(f'v_add_f32 v38, v{48+r}, v{52+r}'); e('v_add_f32 v37, v37, v38')
        e('s_mov_b64 s[44:45], exec'); e('v_cmp_eq_u32 s[46:47], 0, v4'); e('s_nop 1'); e('s_and_b64 exec, exec, s[46:47]')
        e(f'buffer_store_dwordx2 v[36:37], v34, s[24:27], s33 offen offset:{r*256}')
        e('s_nop 1'); e('s_mov_b64 exec, s[44:45]')
    lab('K2_END'); e('s_endpgm')
    kern.append(('k2_kernel',128,56))
BF=60

def outproj(wsrd):
    e('v_lshlrev_b32 v5, 3, v0')
    e('s_mov_b32 s34, s33')
    for i in range(8):
        e(f'buffer_load_dwordx2 v[{32+2*i}:{33+2*i}], v5, s[{wsrd}:{wsrd+3}], s34 offen'); e('s_add_u32 s34, s34, 4608')
    e('s_mov_b32 s35, 29826162'); e('v_mul_hi_u32 v6, v0, s35')
    e('v_mul_u32_u24 v7, 144, v6'); e('v_sub_u32 v7, v0, v7')
    e('v_lshlrev_b32 v8, 2, v6')
    for i in range(8):
        for b in range(2): e(f'ds_read_b32 v{48+2*i+b}, v8 offset:{b*128+i*16}')
    for k in range(8): e(f'v_mov_b32 v{16+k}, 0')
    e('s_waitcnt vmcnt(0) lgkmcnt(0)')
    for i in range(8):
        for j in range(2):
            e(f'v_lshlrev_b32 v10, 16, v{32+2*i+j}'); e(f'v_and_b32 v11, 0xffff0000, v{32+2*i+j}')
            for b in range(2):
                e(f'v_fmac_f32 v{16+4*b+2*j}, v{48+2*i+b}, v10'); e(f'v_fmac_f32 v{17+4*b+2*j}, v{48+2*i+b}, v11')
    e('v_mul_u32_u24 v9, 4608, v6'); e('v_lshl_add_u32 v9, v7, 4, v9')
    e('ds_write_b128 v9, v[16:19] offset:1024'); e('ds_write_b128 v9, v[20:23] offset:3328')
    e('s_waitcnt lgkmcnt(0)'); e('s_barrier')
    e('v_lshlrev_b32 v9, 3, v0')
    for g in range(4): e(f'ds_read_b64 v[{32+2*g}:{33+2*g}], v9 offset:{1024+4608*g}')
    e('s_waitcnt lgkmcnt(0)')
    for g in range(1,4): e(f'v_add_f32 v32, v32, v{32+2*g}'); e(f'v_add_f32 v33, v33, v{33+2*g}')
    e('s_mul_i32 s36, s2, 4608'); e(f's_add_u32 s36, s36, {OUTP}')
    e('buffer_store_dwordx2 v[32:33], v9, s[24:27], s36 offen')

def k3():
    begin('k3_kernel')
    e('s_cmp_ge_u32 s2, 256'); e('s_cbranch_scc1 K3_END')
    e('s_load_dwordx2 s[4:5], s[0:1], 32'); e('s_load_dwordx2 s[6:7], s[0:1], 72')
    e('s_load_dwordx2 s[20:21], s[0:1], 80'); e('s_load_dwordx2 s[22:23], s[0:1], 104')
    e('s_and_b32 s3, s2, 127'); e('s_lshr_b32 s30, s3, 2'); e('s_and_b32 s31, s3, 3')
    e('s_waitcnt lgkmcnt(0)')
    srd(8,4,4096*1152); srd(12,6,512*8192); srd(16,20,4096*1152); srd(24,22,WSSZ)
    e('s_mul_i32 s33, s3, 36864')
    e('s_cmp_ge_u32 s2, 128'); e('s_cbranch_scc1 K3_B')
    e('v_cmp_gt_u32 vcc, 64, v0'); e('s_and_saveexec_b64 s[42:43], vcc'); e('s_cbranch_execz K3_A1')
    e('v_lshrrev_b32 v1, 5, v0'); e('v_and_b32 v2, 31, v0')
    e('s_mul_i32 s34, s30, 4224'); e(f's_add_u32 s34, s34, {PARTA}')
    e('s_mov_b32 s35, 135168'); e('v_mul_lo_u32 v3, v1, s35')
    e('s_lshl_b32 s36, s31, 7'); e('v_lshl_add_u32 v4, v2, 2, v3'); e('v_add_u32 v4, s36, v4'); e('v_add_u32 v3, 0x200, v3')
    for s in range(8):
        e(f'buffer_load_dword v{32+s}, v4, s[24:27], s34 offen offset:{s*528}')
        e(f'buffer_load_dwordx2 v[{40+2*s}:{41+2*s}], v3, s[24:27], s34 offen offset:{s*528}')
    e('s_waitcnt vmcnt(0)')
    e('v_max_f32 v5, v40, v42')
    for s in range(2,8): e(f'v_max_f32 v5, v5, v{40+2*s}')
    e('v_mov_b32 v6, 0'); e('v_mov_b32 v7, 0')
    for s in range(8):
        e(f'v_sub_f32 v8, v{40+2*s}, v5'); e('v_exp_f32 v8, v8'); e('s_nop 0')
        e(f'v_fmac_f32 v6, v8, v{32+s}'); e(f'v_fmac_f32 v7, v8, v{41+2*s}')
    e('v_rcp_f32 v7, v7'); e('s_nop 0'); e('v_mul_f32 v6, v6, v7')
    e('v_cvt_pk_bf16_f32 v6, v6, v6'); e('v_lshlrev_b32 v6, 16, v6')
    e('v_lshlrev_b32 v8, 2, v0'); e('ds_write_b32 v8, v6')
    lab('K3_A1'); e('s_mov_b64 exec, s[42:43]')
    e('s_waitcnt lgkmcnt(0)'); e('s_barrier')
    outproj(8)
    e('s_endpgm')
    lab('K3_B')
    e('v_cmp_gt_u32 vcc, 64, v0'); e('s_and_saveexec_b64 s[42:43], vcc'); e('s_cbranch_execz K3_B1')
    e('v_lshrrev_b32 v1, 5, v0'); e('v_and_b32 v2, 31, v0')
    e('s_lshl_b32 s34, s30, 8'); e(f's_add_u32 s34, s34, {STATB}')
    e('v_lshlrev_b32 v3, 13, v1'); e('v_lshl_add_u32 v3, v2, 3, v3')
    e('buffer_load_dwordx2 v[4:5], v3, s[24:27], s34 offen')
    e('s_waitcnt vmcnt(0)')
    e('v_mov_b32 v6, v4')
    rowred('v_max_f32',[6],None)
    e('s_nop 1'); e('ds_swizzle_b32 v7, v6 offset:0x401F'); e('s_waitcnt lgkmcnt(0)'); e('v_max_f32 v6, v6, v7')
    e('v_sub_f32 v4, v4, v6'); e('v_exp_f32 v4, v4'); e('s_nop 0'); e('v_mul_f32 v5, v4, v5')
    rowred('v_add_f32',[5],None)
    e('s_nop 1'); e('ds_swizzle_b32 v7, v5 offset:0x401F'); e('s_waitcnt lgkmcnt(0)'); e('v_add_f32 v5, v5, v7')
    e('v_rcp_f32 v5, v5'); e('s_nop 0'); e('v_mul_f32 v4, v4, v5')
    e('v_lshlrev_b32 v8, 2, v0'); e('ds_write_b32 v8, v4 offset:20480')
    lab('K3_B1'); e('s_mov_b64 exec, s[42:43]')
    e('s_waitcnt lgkmcnt(0)'); e('s_barrier')
    e('v_cmp_gt_u32 vcc, 0x200, v0'); e('s_and_saveexec_b64 s[42:43], vcc'); e('s_cbranch_execz K3_B2')
    e('v_lshlrev_b32 v3, 2, v0')
    for b in range(2):
        e(f's_lshl_b32 s34, s30, 16'); e(f's_add_u32 s34, s34, {PARTB+b*2097152}')
        for s in range(32):
            e(f'buffer_load_dword v{32+32*b+s}, v3, s[24:27], s34 offen offset:{(s&1)*2048}')
            if s&1: e('s_add_u32 s34, s34, 4096')
    e('v_mov_b32 v4, 0')
    for b in range(2):
        e(f'v_mov_b32 v{8+b}, 0')
        for q in range(8): e(f'ds_read_b128 v[{96+4*q}:{99+4*q}], v4 offset:{20480+b*128+q*16}')
        e(f's_waitcnt vmcnt({32 if b==0 else 0}) lgkmcnt(0)')
        for s in range(32): e(f'v_fmac_f32 v{8+b}, v{96+s}, v{32+32*b+s}')
        e(f'ds_write_b32 v3, v{8+b} offset:{20736+b*2048}')
    e('s_waitcnt lgkmcnt(0)')
    lab('K3_B2'); e('s_mov_b64 exec, s[42:43]')
    e('s_barrier')
    e('v_cmp_gt_u32 vcc, 0x200, v0'); e('s_and_saveexec_b64 s[42:43], vcc'); e('s_cbranch_execz K3_B3')
    e('v_lshrrev_b32 v1, 2, v0'); e('v_and_b32 v2, 3, v0')
    e('s_lshl_b32 s34, s30, 8'); e('s_lshl_b32 s35, s31, 6'); e('s_add_u32 s34, s34, s35')
    e('v_lshlrev_b32 v3, 13, v1'); e('v_lshl_add_u32 v3, v2, 4, v3')
    for i in range(4):
        e(f'buffer_load_dwordx4 v[{32+4*i}:{35+4*i}], v3, s[12:15], s34 offen'); e('s_add_u32 s34, s34, 1048576')
    e('v_lshlrev_b32 v4, 2, v1')
    for i in range(4):
        for b in range(2): e(f'ds_read_b32 v{48+2*i+b}, v4 offset:{20736+b*2048+i*512}')
    for k in range(16): e(f'v_mov_b32 v{8+k}, 0')
    e('s_waitcnt vmcnt(0) lgkmcnt(0)')
    for i in range(4):
        for j in range(4):
            e(f'v_lshlrev_b32 v24, 16, v{32+4*i+j}'); e(f'v_and_b32 v25, 0xffff0000, v{32+4*i+j}')
            for b in range(2):
                e(f'v_fmac_f32 v{8+b*8+2*j}, v{48+2*i+b}, v24'); e(f'v_fmac_f32 v{8+b*8+2*j+1}, v{48+2*i+b}, v25')
    for ror in (4,8):
        e('s_nop 1')
        for k in range(16): e(f'v_add_f32_dpp v{8+k}, v{8+k}, v{8+k} row_ror:{ror}'+DPP)
    e('v_lshrrev_b32 v26, 4, v0'); e('v_lshlrev_b32 v26, 8, v26'); e('v_lshl_add_u32 v26, v2, 6, v26')
    e('v_and_b32 v27, 15, v0'); e('v_cmp_gt_u32 vcc, 4, v27'); e('s_and_b64 exec, exec, vcc')
    for k in range(4): e(f'ds_write_b128 v26, v[{8+4*k}:{11+4*k}] offset:{24832+16*k}')
    e('s_waitcnt lgkmcnt(0)')
    lab('K3_B3'); e('s_mov_b64 exec, s[42:43]')
    e('s_barrier')
    e('v_cmp_gt_u32 vcc, 64, v0'); e('s_and_saveexec_b64 s[42:43], vcc'); e('s_cbranch_execz K3_B4')
    e('v_lshlrev_b32 v26, 2, v0')
    for k in range(32): e(f'ds_read_b32 v{32+k}, v26 offset:{24832+256*k}')
    e('s_waitcnt lgkmcnt(0)')
    for k in range(1,32): e(f'v_add_f32 v32, v32, v{32+k}')
    e('v_cvt_pk_bf16_f32 v32, v32, v32'); e('v_lshlrev_b32 v32, 16, v32')
    e('v_lshrrev_b32 v3, 4, v0'); e('v_lshlrev_b32 v3, 5, v3'); e('v_and_b32 v4, 7, v0'); e('v_lshl_add_u32 v3, v4, 2, v3')
    e('v_bfe_u32 v4, v0, 3, 1'); e('v_lshl_add_u32 v3, v4, 7, v3')
    e('ds_write_b32 v3, v32'); e('s_waitcnt lgkmcnt(0)')
    lab('K3_B4'); e('s_mov_b64 exec, s[42:43]')
    e('s_barrier')
    outproj(16)
    lab('K3_END'); e('s_endpgm')
    kern.append(('k3_kernel',128,56))

def k4():
    begin('k4_kernel')
    e('s_cmp_ge_u32 s2, 36'); e('s_cbranch_scc1 K4_END')
    e('s_load_dwordx2 s[4:5], s[0:1], 88'); e('s_load_dwordx2 s[6:7], s[0:1], 104')
    e('v_lshrrev_b32 v1, 6, v0'); e('v_and_b32 v2, 63, v0')
    e('s_waitcnt lgkmcnt(0)')
    srd(8,4,4608); srd(12,6,WSSZ)
    e('s_cmp_ge_u32 s2, 18'); e('s_cselect_b32 s30, 1, 0')
    e('s_mul_i32 s31, s30, 18'); e('s_sub_u32 s31, s2, s31'); e('s_lshl_b32 s31, s31, 6')
    e('v_add_u32 v3, s31, v2')
    e('s_mul_i32 s32, s30, 589824'); e(f's_add_u32 s32, s32, {OUTP}')
    e('v_mul_u32_u24 v4, 147456, v1') if False else None
    e('s_mov_b32 s33, 147456'); e('v_mul_lo_u32 v4, v1, s33'); e('v_lshl_add_u32 v4, v3, 2, v4')
    for k in range(32):
        e(f'buffer_load_dword v{32+k}, v4, s[12:15], s32 offen'); e('s_add_u32 s32, s32, 4608')
    e('s_waitcnt vmcnt(0)')
    for k in range(1,32): e(f'v_add_f32 v32, v32, v{32+k}')
    e('v_lshlrev_b32 v5, 2, v0'); e('ds_write_b32 v5, v32'); e('s_waitcnt lgkmcnt(0)'); e('s_barrier')
    e('v_cmp_gt_u32 vcc, 64, v0'); e('s_and_saveexec_b64 s[42:43], vcc'); e('s_cbranch_execz K4_END')
    for w in range(4): e(f'ds_read_b32 v{32+w}, v5 offset:{256*w}')
    e('s_waitcnt lgkmcnt(0)')
    e('v_add_f32 v32, v32, v33'); e('v_add_f32 v34, v34, v35'); e('v_add_f32 v32, v32, v34')
    e('v_cvt_pk_bf16_f32 v32, v32, v32')
    e('v_cmp_le_u32 vcc, 0x240, v3'); e('v_mov_b32 v6, 0x240'); e('s_nop 1'); e('v_cndmask_b32 v6, 0, v6, vcc')
    e('v_add_u32 v6, v6, v3'); e('s_mul_i32 s34, s30, 576'); e('v_add_u32 v6, s34, v6'); e('v_lshlrev_b32 v6, 1, v6')
    e('buffer_store_short v32, v6, s[8:11], 0 offen')
    lab('K4_END'); e('s_endpgm')
    kern.append(('k4_kernel',64,48))

BF=60
hdr=open('concat_heads__gqa_block_cached__compressed_kv_cla__decode.s.ref').read().split('\n')
hdr=[h for h in hdr if h.startswith(';') and '@launch' not in h and not h.startswith('; Override') and not h.startswith('; grid=ceil')]
L+=hdr
L+=['; @launch kernel=k1_kernel grid=(256,1,1) block=(256,1,1) lds=4096',
    '; @launch kernel=k1b_kernel grid=(256,1,1) block=(256,1,1) lds=0',
    '; @launch kernel=k2_kernel grid=(320,1,1) block=(512,1,1) lds=73728',
    '; @launch kernel=k3_kernel grid=(256,1,1) block=(576,1,1) lds=33792',
    '; @launch kernel=k4_kernel grid=(36,1,1) block=(256,1,1) lds=1024',
    '.amdgcn_target "amdgcn-amd-amdhsa--gfx950"','.text']
import sys
k1(); k1b(); k2(); k3(); k4()
L.append('.section .rodata,"a"')
for n,v,s in kern:
    L+=['.p2align 6',f'.amdhsa_kernel {n}',f'  .amdhsa_next_free_vgpr {v}',f'  .amdhsa_next_free_sgpr {s}',f'  .amdhsa_accum_offset {v}',
        '  .amdhsa_group_segment_fixed_size 0','  .amdhsa_kernarg_size 112','  .amdhsa_user_sgpr_count 2','  .amdhsa_user_sgpr_kernarg_segment_ptr 1',
        '  .amdhsa_system_sgpr_workgroup_id_x 1','.end_amdhsa_kernel']
open(OUT,'w').write('\n'.join(x for x in L if x is not None)+'\n')
```

```python
import struct, os
NAME='concat_heads__gqa_block_cached__compressed_kv_cla__decode'
OUT=os.environ.get('OUTF','') or f'cdna_kernels/{NAME}.s'
L=[]
def e(s): L.append('    '+s)
def lab(s): L.append(s+':')
def f32(x): return '0x%08x'%struct.unpack('<I',struct.pack('<f',x))[0]
CS=f32(1.4426950408889634/(128**0.5))
QA=0; QB=16384; QP=32768; PARTA=98304; STATB=368640; PARTB=393216; OUTP=4587520
WSSZ=8*1024*1024
DPP=' row_mask:0xf bank_mask:0xf'
HUGE='0x7fffff00'
SX,SW,SUK,SK,SV,SC,SWS,SDBG,SWO,SUV,SOUT=8,12,16,20,24,28,32,36,40,44,48
uid=[0]
def U(p): uid[0]+=1; return f'{p}_{uid[0]}'
def srd(d, lo, size):
    e(f's_mov_b32 s{d}, s{lo}'); e(f's_and_b32 s{d+1}, s{lo+1}, 0xffff'); e(f's_mov_b32 s{d+2}, {size}'); e(f's_mov_b32 s{d+3}, 0x00020000')
def S(d): return f's[{d}:{d+3}]'
def rowred(op, regs):
    for ror in (8,4,2,1):
        e('s_nop 1')
        for r in regs: e(f'{op}_dpp v{r}, v{r}, v{r} row_ror:{ror}'+DPP)
def w0_begin():
    l=U('W0E'); e('s_cmp_lg_u32 s60, 0'); e(f's_cbranch_scc1 {l}'); return l
def w0_end(l): lab(l)
def signal(off_sgpr):
    e('s_mov_b64 s[62:63], exec'); e('s_mov_b64 exec, 1')
    e('v_mov_b32 v5, 1'); e(f'v_mov_b32 v6, {off_sgpr}')
    e(f'buffer_atomic_add v5, v6, {S(SDBG)}, 0 offen')
    e('s_mov_b64 exec, s[62:63]')
def wait(off_sgpr, n, target):
    lp=U('POLL'); dn=U('PDONE')
    e('s_mov_b64 s[62:63], exec'); e(f's_mov_b64 exec, {(1<<n)-1}')
    e('v_lshlrev_b32 v6, 2, v2'); e(f'v_add_u32 v6, {off_sgpr}, v6')
    e('s_mov_b32 s64, 0')
    lab(lp)
    e(f'buffer_load_dword v5, v6, {S(SDBG)}, 0 offen sc1')
    e('s_waitcnt vmcnt(0)')
    e(f'v_cmp_le_u32 vcc, {target}, v5')
    e('s_nop 3')
    e('s_cmp_eq_u64 vcc, exec'); e(f's_cbranch_scc1 {dn}')
    e('s_add_u32 s64, s64, 1'); e('s_cmp_gt_u32 s64, 0x20000'); e(f's_cbranch_scc1 {dn}')
    e('s_sleep 1'); e(f's_branch {lp}')
    lab(dn)
    e('s_mov_b64 exec, s[62:63]')

def body():
    L.append(f'.globl {NAME}_kernel'); L.append('.p2align 8'); L.append(f'.type {NAME}_kernel,@function'); lab(f'{NAME}_kernel')
    e('s_cmp_ge_u32 s2, 256'); e('s_cbranch_scc1 END')
    e('s_load_dwordx16 s[68:83], s[0:1], 0'); e('s_load_dwordx8 s[84:91], s[0:1], 64'); e('s_load_dwordx4 s[92:95], s[0:1], 96')
    e('v_lshrrev_b32 v1, 6, v0'); e('v_and_b32 v2, 63, v0'); e('v_lshrrev_b32 v3, 4, v2'); e('v_and_b32 v4, 15, v2')
    for r in (12,13,14,15): e(f'v_mov_b32 v{r}, {HUGE}')
    e('v_readfirstlane_b32 s60, v1')
    e(f's_mov_b32 s61, {CS}')
    e('s_waitcnt lgkmcnt(0)')
    e('s_cmp_lt_u32 s2, 128')
    e('s_cselect_b64 s[4:5], s[68:69], s[78:79]'); e('s_cselect_b64 s[6:7], s[74:75], s[82:83]'); e('s_cselect_b64 s[52:53], s[76:77], s[88:89]')
    srd(SX,4,2304); srd(SW,6,576*8192); srd(SUK,84,512*8192); srd(SK,70,2*16*4096*256); srd(SV,72,2*16*4096*256)
    srd(SC,80,2*4096*1024); srd(SWS,94,WSSZ); srd(SDBG,92,256); srd(SWO,52,4096*1152); srd(SUV,86,512*8192); srd(SOUT,90,4608)
    e('s_and_b32 s3, s2, 127'); e('s_lshl_b32 s54, s3, 6')
    e('v_lshrrev_b32 v7, 2, v0'); e('v_and_b32 v8, 3, v0')
    e('v_lshlrev_b32 v9, 13, v7'); e('v_lshl_add_u32 v9, v8, 4, v9'); e('v_add_u32 v9, s54, v9')
    e('v_lshlrev_b32 v10, 1, v7')
    e('s_mov_b32 s55, 0')
    for i in range(5):
        e(f'buffer_load_dwordx4 v[{16+4*i}:{19+4*i}], v9, {S(SW)}, s55 offen nt'); e('s_add_u32 s55, s55, 1048576')
    for i in range(5):
        for b in range(2): e(f'buffer_load_ushort v{36+2*i+b}, v10, {S(SX)}, 0 offen offset:{b*1152+i*256}')
    e('s_lshr_b32 s56, s2, 3'); e('s_and_b32 s57, s2, 7')
    e('v_lshrrev_b32 v11, 4, v0'); e('v_lshlrev_b32 v11, 13, v11'); e('v_lshl_add_u32 v11, v4, 4, v11')
    e('s_lshl_b32 s55, s57, 19'); e('s_lshl_b32 s58, s56, 8'); e('s_add_u32 s55, s55, s58')
    for i in range(2):
        e(f'buffer_load_dwordx4 v[{64+4*i}:{67+4*i}], v11, {S(SUK)}, s55 offen nt'); e('s_add_u32 s55, s55, 262144')
    e('s_cmp_ge_u32 s2, 224'); e('s_cbranch_scc1 ROLE_B')
    e('s_mul_hi_u32 s96, s2, 613566757'); e('s_mul_i32 s97, s96, 7'); e('s_sub_u32 s97, s2, s97')
    e('s_cmp_eq_u32 s97, 6'); e('s_movk_i32 s98, 0x5000'); e('s_cselect_b32 s98, 0x2000, s98'); e(f's_cselect_b32 s99, 0xff800000, 0')
    e('s_lshl_b32 s55, s96, 20'); e('s_mul_i32 s58, s97, 163840'); e('s_add_u32 s55, s55, s58')
    e('v_mul_lo_u32 v12, v1, s98'); e('v_add_u32 v12, s55, v12')
    e('v_lshl_add_u32 v13, v4, 8, v12'); e('v_lshl_add_u32 v13, v3, 4, v13')
    e('v_lshl_add_u32 v12, v2, 4, v12')
    e(f'v_mov_b32 v14, {HUGE}'); e('v_mov_b32 v15, v14')
    e('s_cmp_eq_u32 s97, 6'); e('s_cbranch_scc1 SHORT_SET')
    e('v_mov_b32 v14, v13'); e('v_mov_b32 v15, v12')
    lab('SHORT_SET')
    e('s_cmp_eq_u32 s60, 0'); e('s_cbranch_scc1 PF_DONE')
    kvissue()
    e('s_branch PF_DONE')
    lab('ROLE_B')
    e('s_sub_u32 s96, s2, 224')
    e('s_lshl_b32 s55, s96, 18')
    e('v_lshlrev_b32 v12, 13, v1'); e('v_lshl_add_u32 v12, v2, 4, v12'); e('v_add_u32 v12, s55, v12')
    e('s_cmp_eq_u32 s60, 0'); e('s_cbranch_scc1 PF_DONE')
    cissue()
    lab('PF_DONE')
    for k in range(16): e(f'v_mov_b32 v{46+k}, 0')
    e('s_cmp_eq_u32 s60, 0'); e('s_cbranch_scc1 P1W0')
    e('s_cmp_ge_u32 s2, 224'); e('s_cbranch_scc1 P1WB')
    e('s_waitcnt vmcnt(42)'); e('s_branch P1GO')
    lab('P1WB'); e('s_waitcnt vmcnt(34)'); e('s_branch P1GO')
    lab('P1W0'); e('s_waitcnt vmcnt(2)')
    lab('P1GO')
    for i in range(10): e(f'v_lshlrev_b32 v{36+i}, 16, v{36+i}')
    for i in range(5):
        for j in range(4):
            e(f'v_lshlrev_b32 v62, 16, v{16+4*i+j}'); e(f'v_and_b32 v63, 0xffff0000, v{16+4*i+j}')
            for b in range(2):
                e(f'v_fmac_f32 v{46+b*8+2*j}, v{36+2*i+b}, v62'); e(f'v_fmac_f32 v{46+b*8+2*j+1}, v{36+2*i+b}, v63')
    for ror in (4,8):
        e('s_nop 1')
        for k in range(16): e(f'v_add_f32_dpp v{46+k}, v{46+k}, v{46+k} row_ror:{ror}'+DPP)
    e('v_lshrrev_b32 v5, 4, v0'); e('v_lshlrev_b32 v5, 8, v5'); e('v_lshl_add_u32 v5, v8, 6, v5')
    e('v_cmp_gt_u32 vcc, 4, v4'); e('s_and_saveexec_b64 s[62:63], vcc')
    for k in range(4): e(f'ds_write_b128 v5, v[{46+4*k}:{49+4*k}] offset:{16*k}')
    e('s_mov_b64 exec, s[62:63]')
    e('s_waitcnt lgkmcnt(0)'); e('s_barrier')
    l0=w0_begin()
    e('v_lshlrev_b32 v5, 2, v0')
    for k in range(32): e(f'ds_read_b32 v{16+k}, v5 offset:{256*k}')
    e('s_waitcnt lgkmcnt(0)')
    for k in range(1,32): e(f'v_add_f32 v16, v16, v{16+k}')
    e('v_cvt_pk_bf16_f32 v16, v16, v16')
    e('v_lshlrev_b32 v5, 4, v3'); e('v_and_b32 v6, 7, v0'); e('v_lshl_add_u32 v5, v6, 1, v5')
    e('v_bfe_u32 v6, v0, 3, 1'); e('v_lshl_add_u32 v5, v6, 13, v5')
    e('s_lshr_b32 s55, s2, 7'); e('s_lshl_b32 s55, s55, 14'); e('s_add_u32 s55, s55, s54')
    e(f'buffer_store_short v16, v5, {S(SWS)}, s55 offen sc1')
    e('s_waitcnt vmcnt(0)')
    e('s_lshr_b32 s55, s2, 3'); e('s_lshl_b32 s55, s55, 2')
    e('s_sub_u32 s58, s2, 128'); e('s_lshr_b32 s58, s58, 2'); e('s_lshl_b32 s58, s58, 2'); e('s_add_u32 s58, s58, 64')
    e('s_cmp_lt_u32 s2, 128'); e('s_cselect_b32 s55, s55, s58')
    signal('s55')
    e('s_lshl_b32 s55, s56, 2'); e('s_add_u32 s55, s55, 64')
    wait('s55',1,4)
    e('v_lshlrev_b32 v5, 13, v3'); e('v_lshl_add_u32 v5, v4, 4, v5')
    e('s_lshl_b32 s55, s56, 8'); e(f's_add_u32 s55, s55, {QB}')
    e(f'buffer_load_dwordx4 v[16:19], v5, {S(SWS)}, s55 offen sc1')
    e('v_lshlrev_b32 v6, 4, v2')
    e('s_waitcnt vmcnt(0)'); e('ds_write_b128 v6, v[16:19] offset:8192'); e('s_waitcnt lgkmcnt(0)')
    w0_end(l0)
    e('s_barrier')
    e('v_lshlrev_b32 v5, 4, v4')
    e('ds_read_b128 v[16:19], v5 offset:8192'); e('ds_read_b128 v[20:23], v5 offset:8448')
    for k in range(4): e(f'v_mov_b32 v{46+k}, 0')
    e('s_cmp_eq_u32 s60, 0'); e('s_cbranch_scc1 P1BW0')
    e('s_cmp_ge_u32 s2, 224'); e('s_cbranch_scc1 P1BWB')
    e('s_waitcnt vmcnt(40) lgkmcnt(0)'); e('s_branch P1BGO')
    lab('P1BWB'); e('s_waitcnt vmcnt(32) lgkmcnt(0)'); e('s_branch P1BGO')
    lab('P1BW0'); e('s_waitcnt vmcnt(0) lgkmcnt(0)')
    lab('P1BGO')
    for k in range(4):
        for i in range(2):
            for b in range(2): e(f'v_dot2_f32_bf16 v{46+2*i+b}, v{64+4*i+k}, v{16+4*b+k}, v{46+2*i+b}')
    e('s_nop 3')
    rowred('v_add_f32',[46,47,48,49])
    e('s_nop 1')
    e('v_lshrrev_b32 v5, 4, v0'); e('v_lshlrev_b32 v5, 2, v5')
    for i in range(2):
        for b in range(2): e(f'ds_write_b32 v5, v{46+2*i+b} offset:{9216+b*256+i*128}')
    e('s_waitcnt lgkmcnt(0)'); e('s_barrier')
    l0=w0_begin()
    e('v_lshlrev_b32 v5, 2, v2')
    e('ds_read_b32 v16, v5 offset:9216'); e('ds_read_b32 v17, v5 offset:9472'); e('s_waitcnt lgkmcnt(0)')
    e('v_cvt_pk_bf16_f32 v16, v16, v16'); e('v_cvt_pk_bf16_f32 v17, v17, v17')
    e('s_lshl_b32 s55, s56, 10'); e('s_lshl_b32 s58, s57, 7'); e('s_add_u32 s55, s55, s58'); e(f's_add_u32 s55, s55, {QP}')
    e('s_add_u32 s58, s55, 32768')
    e('v_lshlrev_b32 v5, 1, v2')
    e(f'buffer_store_short v16, v5, {S(SWS)}, s55 offen sc1'); e(f'buffer_store_short v17, v5, {S(SWS)}, s58 offen sc1')
    e('s_waitcnt vmcnt(0)')
    e('s_and_b32 s55, s2, 7'); e('s_lshl_b32 s55, s55, 2'); e('s_add_u32 s55, s55, 192')
    signal('s55')
    w0_end(l0)
    e('s_cmp_ge_u32 s2, 224'); e('s_cbranch_scc1 ATT_B')
    attA()
    e('s_branch P3')
    lab('ATT_B')
    attB()
    lab('P3')
    p3()
    lab('END'); e('s_endpgm')

def kvissue():
    for t in range(5):
        vo='v13' if t<2 else 'v14'
        e(f's_mov_b32 s55, {t*4096}')
        for ks in range(4):
            r=96+16*t+4*ks
            e(f'buffer_load_dwordx4 v[{r}:{r+3}], {vo}, {S(SK)}, s55 offen offset:{ks*64} nt')
    for i in range(20):
        vo='v12' if i<8 else 'v15'
        if i%4==0: e(f's_mov_b32 s55, {(i//4)*4096}')
        e(f'buffer_load_dwordx4 v[{176+4*i}:{179+4*i}], {vo}, {S(SV)}, s55 offen offset:{(i%4)*1024} nt')
def cissue():
    for p in range(4):
        for i in range(8):
            if i%4==0: e(f's_mov_b32 s55, {p*65536+(i//4)*4096}')
            r=96+32*p+4*i
            e(f'buffer_load_dwordx4 v[{r}:{r+3}], v12, {S(SC)}, s55 offen offset:{(i%4)*1024} nt')

def late_loads():
    e('s_mov_b32 s55, 29826162'); e('v_mul_hi_u32 v92, v0, s55')
    e('v_mul_u32_u24 v93, 144, v92'); e('v_sub_u32 v93, v0, v93')
    e('v_mul_u32_u24 v5, 1152, v92'); e('v_lshl_add_u32 v5, v93, 3, v5')
    e('v_cmp_gt_u32 vcc, 0x1b0, v0'); e(f'v_mov_b32 v6, {HUGE}'); e('s_nop 1'); e('v_cndmask_b32 v5, v6, v5, vcc')
    e('s_mul_i32 s55, s3, 36864')
    for i in range(11):
        e(f'buffer_load_dwordx2 v[{16+2*i}:{17+2*i}], v5, {S(SWO)}, s55 offen nt'); e('s_add_u32 s55, s55, 3456')
    e('v_lshrrev_b32 v5, 2, v0'); e('v_lshlrev_b32 v5, 13, v5'); e('v_and_b32 v6, 3, v0'); e('v_lshl_add_u32 v5, v6, 4, v5')
    e('s_cmp_lt_u32 s2, 128'); e(f's_cselect_b32 s55, {HUGE}, 0'); e('v_add_u32 v5, s55, v5')
    e('s_lshl_b32 s55, s3, 6')
    for i in range(4):
        e(f'buffer_load_dwordx4 v[{40+4*i}:{43+4*i}], v5, {S(SUV)}, s55 offen nt'); e('s_add_u32 s55, s55, 1048576')

def attA():
    NL=15
    l0=w0_begin()
    e('s_and_b32 s55, s96, 15'); e('s_lshl_b32 s55, s55, 2')
    wait('s55',1,8)
    e('v_lshlrev_b32 v5, 4, v2'); e('s_lshl_b32 s55, s96, 9')
    e('v_cmp_gt_u32 vcc, 32, v2'); e('s_and_saveexec_b64 s[62:63], vcc')
    e(f'buffer_load_dwordx4 v[16:19], v5, {S(SWS)}, s55 offen sc1')
    e('s_waitcnt vmcnt(0)'); e('ds_write_b128 v5, v[16:19] offset:10240'); e('s_waitcnt lgkmcnt(0)')
    e('s_mov_b64 exec, s[62:63]')
    kvissue()
    w0_end(l0)
    e('s_barrier')
    e('v_lshlrev_b32 v5, 8, v4'); e('v_lshl_add_u32 v5, v3, 4, v5')
    for ks in range(4): e(f'ds_read_b128 v[{56+4*ks}:{59+4*ks}], v5 offset:{10240+ks*64}')
    late_loads()
    e('s_waitcnt lgkmcnt(0)')
    e('v_cmp_gt_u32 vcc, 2, v4'); e('s_nop 1')
    for k in range(16): e(f'v_cndmask_b32 v{56+k}, 0, v{56+k}, vcc')
    e('s_nop 1')
    for t in range(5):
        e(f's_waitcnt vmcnt({20-4*(t+1)+20+NL})')
        for ks in range(4):
            r=96+16*t+4*ks
            c='0' if ks==0 else f'v[{72+4*t}:{75+4*t}]'
            e(f'v_mfma_f32_16x16x32_bf16 v[{72+4*t}:{75+4*t}], v[{56+4*ks}:{59+4*ks}], v[{r}:{r+3}], {c}')
    e('s_nop 7'); e('s_nop 3')
    for t in range(2,5):
        for h in range(2): e(f'v_add_f32 v{72+4*t+h}, s99, v{72+4*t+h}')
    for h in range(2):
        e(f'v_max3_f32 v{8+h}, v{72+h}, v{76+h}, v{80+h}'); e(f'v_max3_f32 v{8+h}, v{8+h}, v{84+h}, v{88+h}')
    rowred('v_max_f32',[8,9])
    e('s_nop 1')
    for h in range(2):
        for t in range(5):
            e(f'v_sub_f32 v{72+4*t+h}, v{72+4*t+h}, v{8+h}'); e(f'v_mul_f32 v{72+4*t+h}, s61, v{72+4*t+h}')
    for h in range(2):
        for t in range(5): e(f'v_exp_f32 v{72+4*t+h}, v{72+4*t+h}')
    e('s_nop 0')
    for h in range(2):
        e(f'v_add_f32 v{10+h}, v{72+h}, v{76+h}'); e(f'v_add_f32 v7, v{80+h}, v{84+h}'); e(f'v_add_f32 v{10+h}, v{10+h}, v7'); e(f'v_add_f32 v{10+h}, v{10+h}, v{88+h}')
    rowred('v_add_f32',[10,11])
    e('v_mul_u32_u24 v5, 640, v1'); e('v_lshl_add_u32 v5, v2, 3, v5')
    e('v_cmp_gt_u32 vcc, 16, v2'); e('s_and_saveexec_b64 s[62:63], vcc')
    for t in range(5): e(f'ds_write_b64 v5, v[{72+4*t}:{73+4*t}] offset:{11264+t*128}')
    e('v_lshlrev_b32 v6, 4, v1'); e('ds_write_b128 v6, v[8:11] offset:16384')
    e('s_mov_b64 exec, s[62:63]')
    for k in range(16): e(f'v_mov_b32 v{56+k}, 0')
    e('s_waitcnt lgkmcnt(0)')
    e('v_mul_u32_u24 v5, 640, v1'); e('v_lshl_add_u32 v5, v3, 3, v5')
    for half in range(2):
        for ii in range(10): e(f'ds_read_b64 v[{96+2*ii}:{97+2*ii}], v5 offset:{11264+(half*10+ii)*32}')
        for ii in range(10):
            i=half*10+ii; pr=96+2*ii; vr=176+4*i
            e(f's_waitcnt vmcnt({19-i+NL}) lgkmcnt({9-ii})')
            for j in range(4):
                e(f'v_lshlrev_b32 v6, 16, v{vr+j}'); e(f'v_and_b32 v7, 0xffff0000, v{vr+j}')
                e(f'v_pk_fma_f32 v[{56+2*j}:{57+2*j}], v[6:7], v[{pr}:{pr+1}], v[{56+2*j}:{57+2*j}] op_sel:[0,0,0] op_sel_hi:[1,0,1]')
                e(f'v_pk_fma_f32 v[{64+2*j}:{65+2*j}], v[6:7], v[{pr}:{pr+1}], v[{64+2*j}:{65+2*j}] op_sel:[0,1,0] op_sel_hi:[1,1,1]')
    e('v_lshl_add_u32 v5, v1, 2, v3'); e('v_lshlrev_b32 v5, 10, v5'); e('v_lshl_add_u32 v5, v4, 5, v5')
    for h in range(2):
        e(f'ds_write_b128 v5, v[{56+8*h}:{59+8*h}] offset:{17408+512*h}'); e(f'ds_write_b128 v5, v[{60+8*h}:{63+8*h}] offset:{17408+512*h+16}')
    e('s_waitcnt lgkmcnt(0)'); e('s_barrier')
    lsk=U('ASK')
    e('s_cmp_ge_u32 s60, 4'); e(f's_cbranch_scc1 {lsk}')
    e('v_lshrrev_b32 v5, 7, v0'); e('v_and_b32 v6, 127, v0'); e('v_lshlrev_b32 v7, 2, v5')
    for w in range(8):
        e(f'ds_read_b32 v{96+w}, v7 offset:{16384+16*w}'); e(f'ds_read_b32 v{104+w}, v7 offset:{16384+16*w+8}')
    e('v_lshlrev_b32 v8, 9, v5'); e('v_lshl_add_u32 v8, v6, 2, v8')
    for wg in range(32): e(f'ds_read_b32 v{112+wg}, v8 offset:{17408+1024*wg}')
    e('s_waitcnt lgkmcnt(0)')
    e('v_max_f32 v9, v96, v97')
    for w in range(2,8): e(f'v_max_f32 v9, v9, v{96+w}')
    for w in range(8):
        e(f'v_sub_f32 v{96+w}, v{96+w}, v9'); e(f'v_mul_f32 v{96+w}, s61, v{96+w}'); e(f'v_exp_f32 v{96+w}, v{96+w}')
    e('v_mov_b32 v10, 0'); e('v_mov_b32 v11, 0')
    for w in range(8):
        e(f'v_add_f32 v12, v{112+4*w}, v{113+4*w}'); e(f'v_add_f32 v13, v{114+4*w}, v{115+4*w}'); e('v_add_f32 v12, v12, v13')
        e(f'v_fmac_f32 v10, v{96+w}, v12'); e(f'v_fmac_f32 v11, v{96+w}, v{104+w}')
    e('v_mul_f32 v9, s61, v9')
    e('s_mul_i32 s55, s96, 14'); e('s_add_u32 s55, s55, s97'); e('s_mul_i32 s55, s55, 528'); e(f's_add_u32 s55, s55, {PARTA}')
    e('v_mul_u32_u24 v12, 3696, v5'); e('v_lshl_add_u32 v12, v6, 2, v12')
    e(f'buffer_store_dword v10, v12, {S(SWS)}, s55 offen sc1')
    e('v_cmp_eq_u32 vcc, 0, v6'); e('s_and_saveexec_b64 s[62:63], vcc'); l2=U('ASK2'); e(f's_cbranch_execz {l2}')
    e('v_mov_b32 v10, v9')
    e(f'buffer_store_dwordx2 v[10:11], v12, {S(SWS)}, s55 offen offset:512 sc1')
    lab(l2); e('s_mov_b64 exec, s[62:63]')
    lab(lsk)
    e('s_waitcnt vmcnt(0)'); e('s_barrier')
    l0=w0_begin()
    e('s_and_b32 s55, s96, 15'); e('s_lshl_b32 s55, s55, 2'); signal('s55')
    w0_end(l0)

PBUF=0; SMAX=4608; LSUM=5120; QL=5632; CT=38912
def attB():
    l0=w0_begin()
    e('s_mov_b32 s55, 192'); wait('s55',8,32)
    e('s_lshr_b32 s55, s96, 4'); e('s_lshl_b32 s55, s55, 15'); e(f's_add_u32 s55, s55, {QP}')
    e('v_lshlrev_b32 v5, 4, v2')
    for h in range(32):
        e(f'buffer_load_dwordx4 v[{96+4*h}:{99+4*h}], v5, {S(SWS)}, s55 offen offset:{(h%4)*1024} sc1')
        if h%4==3: e('s_add_u32 s55, s55, 4096')
    e(f'v_add_u32 v6, {QL}, v5')
    for h in range(32):
        e(f's_waitcnt vmcnt({31-h})'); e(f'ds_write_b128 v6, v[{96+4*h}:{99+4*h}] offset:{h*1040}')
    e('s_waitcnt lgkmcnt(0)')
    cissue()
    w0_end(l0)
    e('v_mul_u32_u24 v6, 8320, v1'); e('v_lshl_add_u32 v6, v2, 4, v6'); e(f'v_add_u32 v6, {CT}, v6')
    e('v_and_b32 v7, 1, v1'); e('v_lshrrev_b32 v8, 1, v1')
    e('v_lshl_add_u32 v9, v7, 4, v4'); e('v_mul_u32_u24 v9, 1040, v9'); e('v_lshl_add_u32 v9, v3, 4, v9'); e(f'v_add_u32 v9, {QL}, v9')
    e('v_lshl_add_u32 v10, v8, 4, v4'); e('v_mul_u32_u24 v10, 1040, v10'); e('v_lshl_add_u32 v10, v3, 4, v10'); e(f'v_add_u32 v10, {CT}, v10')
    e('v_lshlrev_b32 v11, 7, v8'); e('v_lshl_add_u32 v11, v7, 6, v11'); e('v_lshl_add_u32 v11, v3, 4, v11')
    e('v_lshlrev_b32 v16, 4, v3')
    e('v_lshl_add_u32 v17, v7, 2, v3'); e('v_mul_u32_u24 v17, 576, v17'); e('v_lshl_add_u32 v18, v8, 4, v4'); e('v_lshl_add_u32 v17, v18, 1, v17')
    e('v_mul_u32_u24 v18, 144, v4'); e('v_lshl_add_u32 v18, v3, 4, v18')
    e('v_lshrrev_b32 v19, 2, v4'); e('v_lshl_add_u32 v19, v3, 3, v19'); e('v_mul_u32_u24 v19, 1040, v19')
    e('v_and_b32 v20, 3, v4'); e('v_lshl_add_u32 v19, v20, 3, v19'); e('v_lshl_add_u32 v19, v1, 7, v19'); e(f'v_add_u32 v19, {CT}, v19')
    for k in range(8): e(f'v_mov_b32 v{20+k}, 0xff800000')
    for k in range(4): e(f'v_mov_b32 v{28+k}, 0')
    for k in range(32): e(f'v_mov_b32 v{224+k}, 0')
    for p in range(4):
        e(f's_waitcnt vmcnt({24-8*p})')
        e('s_barrier')
        for i in range(8): e(f'ds_write_b128 v6, v[{96+32*p+4*i}:{99+32*p+4*i}] offset:{i*1040}')
        e('s_waitcnt lgkmcnt(0)'); e('s_barrier')
        for half in range(2):
            for k in range(8):
                ks=half*8+k
                e(f'ds_read_b128 v[{32+8*k}:{35+8*k}], v9 offset:{ks*64}'); e(f'ds_read_b128 v[{36+8*k}:{39+8*k}], v10 offset:{ks*64}')
            for k in range(8):
                ks=half*8+k
                e(f's_waitcnt lgkmcnt({14-2*k})')
                c='0' if ks==0 else 'v[12:15]'
                e(f'v_mfma_f32_16x16x32_bf16 v[12:15], v[{32+8*k}:{35+8*k}], v[{36+8*k}:{39+8*k}], {c}')
            e('s_nop 3')
        e('s_nop 7'); e('s_nop 3')
        for r in range(4): e(f'v_mov_b32 v{32+r}, v{12+r}')
        rowred('v_max_f32',[32,33,34,35])
        e('s_nop 1')
        e(f'ds_write_b128 v11, v[32:35] offset:{SMAX}')
        e('s_waitcnt lgkmcnt(0)'); e('s_barrier')
        for mt in range(2):
            for nt in range(4): e(f'ds_read_b128 v[{32+16*mt+4*nt}:{35+16*mt+4*nt}], v16 offset:{SMAX+nt*128+mt*64}')
        e('s_waitcnt lgkmcnt(0)')
        for mt in range(2):
            for r in range(4):
                b0=32+16*mt+r
                e(f'v_max_f32 v{b0}, v{b0}, v{b0+4}'); e(f'v_max3_f32 v{b0}, v{b0}, v{b0+8}, v{b0+12}')
                e(f'v_max_f32 v{b0}, v{b0}, v{20+4*mt+r}')
                e(f'v_sub_f32 v{b0+4}, v{20+4*mt+r}, v{b0}'); e(f'v_mul_f32 v{b0+4}, s61, v{b0+4}'); e(f'v_exp_f32 v{b0+4}, v{b0+4}')
                e(f'v_mov_b32 v{20+4*mt+r}, v{b0}')
        e('v_cmp_eq_u32 vcc, 1, v7'); e('s_nop 1')
        for r in range(4):
            e(f'v_cndmask_b32 v{40+r}, v{20+r}, v{24+r}, vcc'); e(f'v_cndmask_b32 v{44+r}, v{36+r}, v{52+r}, vcc')
        for r in range(4):
            e(f'v_sub_f32 v{12+r}, v{12+r}, v{40+r}'); e(f'v_mul_f32 v{12+r}, s61, v{12+r}'); e(f'v_exp_f32 v{12+r}, v{12+r}')
        e('s_nop 0')
        for r in range(4):
            e(f'v_fma_f32 v{28+r}, v{28+r}, v{44+r}, v{12+r}'); e(f'v_cvt_pk_bf16_f32 v{40+r}, v{12+r}, v{12+r}')
        for r in range(4): e(f'ds_write_b16 v17, v{40+r} offset:{PBUF+144*r}')
        for mt in range(2):
            for n in range(4):
                for r in range(4): e(f'v_mul_f32 v{224+(mt*4+n)*4+r}, v{36+16*mt+r}, v{224+(mt*4+n)*4+r}')
        e('s_waitcnt lgkmcnt(0)'); e('s_barrier')
        for mt in range(2):
            for ks in range(2): e(f'ds_read_b128 v[{32+(mt*2+ks)*4}:{35+(mt*2+ks)*4}], v18 offset:{PBUF+mt*2304+ks*64}')
        for n in range(4):
            for ks in range(2):
                r=48+n*8+ks*4
                e(f'ds_read_b64_tr_b16 v[{r}:{r+1}], v19 offset:{ks*32*1040+n*32}')
                e(f'ds_read_b64_tr_b16 v[{r+2}:{r+3}], v19 offset:{ks*32*1040+4*1040+n*32}')
        for n in range(4):
            e(f's_waitcnt lgkmcnt({12-4*n})')
            for ks in range(2):
                for mt in range(2):
                    a=224+(mt*4+n)*4
                    e(f'v_mfma_f32_16x16x32_bf16 v[{a}:{a+3}], v[{32+(mt*2+ks)*4}:{35+(mt*2+ks)*4}], v[{48+n*8+ks*4}:{51+n*8+ks*4}], v[{a}:{a+3}]')
        e('s_nop 7'); e('s_nop 3')
    rowred('v_add_f32',[28,29,30,31])
    e('s_nop 1')
    e(f'ds_write_b128 v11, v[28:31] offset:{LSUM}')
    e('s_lshr_b32 s55, s96, 4'); e('s_lshl_b32 s55, s55, 20'); e('s_and_b32 s58, s96, 15'); e('s_lshl_b32 s58, s58, 11'); e('s_add_u32 s55, s55, s58'); e(f's_add_u32 s55, s55, {PARTB}')
    e('v_lshlrev_b32 v32, 17, v3'); e('v_lshl_add_u32 v32, v1, 8, v32'); e('v_lshl_add_u32 v32, v4, 2, v32')
    for mt in range(2):
        for r in range(4):
            e(f's_add_u32 s58, s55, {(mt*16+r)*32768}')
            for n in range(4): e(f'buffer_store_dword v{224+(mt*4+n)*4+r}, v32, {S(SWS)}, s58 offen offset:{n*64} sc1')
    e('s_waitcnt lgkmcnt(0)'); e('s_barrier')
    lsk=U('BSK')
    e('s_cmp_ge_u32 s60, 2'); e(f's_cbranch_scc1 {lsk}')
    e('v_lshlrev_b32 v33, 6, v7'); e('v_lshl_add_u32 v33, v3, 4, v33')
    for nt in range(4): e(f'ds_read_b128 v[{40+4*nt}:{43+4*nt}], v33 offset:{LSUM+nt*128}')
    e('s_waitcnt lgkmcnt(0)')
    e('s_lshr_b32 s55, s96, 4'); e('s_lshl_b32 s55, s55, 12'); e('s_and_b32 s58, s96, 15'); e('s_lshl_b32 s58, s58, 3'); e('s_add_u32 s55, s55, s58'); e(f's_add_u32 s55, s55, {STATB}')
    e('v_lshl_add_u32 v34, v7, 2, v3'); e('v_lshlrev_b32 v34, 9, v34')
    e('v_cmp_eq_u32 s[66:67], 0, v4')
    for r in range(4):
        e('v_cmp_eq_u32 vcc, 1, v7'); e('s_nop 1')
        e(f'v_cndmask_b32 v36, v{20+r}, v{24+r}, vcc'); e('v_mul_f32 v36, s61, v36')
        e(f'v_add_f32 v37, v{40+r}, v{44+r}'); e(f'v_add_f32 v38, v{48+r}, v{52+r}'); e('v_add_f32 v37, v37, v38')
        e('s_mov_b64 s[62:63], exec'); e('s_and_b64 exec, exec, s[66:67]')
        e(f'buffer_store_dwordx2 v[36:37], v34, {S(SWS)}, s55 offen offset:{r*128} sc1')
        e('s_nop 1'); e('s_mov_b64 exec, s[62:63]')
    lab(lsk)
    e('s_waitcnt vmcnt(0)'); e('s_barrier')
    l0=w0_begin()
    e('s_mov_b32 s55, 224'); signal('s55')
    w0_end(l0)
    late_loads()

def p3():
    e('s_lshr_b32 s56, s3, 2'); e('s_and_b32 s57, s3, 3')
    e('s_cmp_ge_u32 s2, 128'); e('s_cbranch_scc1 P3B')
    l0=w0_begin()
    e('s_lshr_b32 s55, s56, 1'); e('s_lshl_b32 s55, s55, 2'); wait('s55',1,22)
    e('v_lshrrev_b32 v5, 5, v0'); e('v_and_b32 v6, 31, v0')
    e('s_mul_i32 s55, s56, 3696'); e(f's_add_u32 s55, s55, {PARTA}')
    e('s_mov_b32 s58, 118272'); e('v_mul_lo_u32 v7, v5, s58')
    e('s_lshl_b32 s58, s57, 7'); e('v_lshl_add_u32 v8, v6, 2, v7'); e('v_add_u32 v8, s58, v8'); e('v_add_u32 v7, 0x200, v7')
    for s in range(7):
        e(f'buffer_load_dword v{96+s}, v8, {S(SWS)}, s55 offen offset:{s*528} sc1')
        e(f'buffer_load_dwordx2 v[{104+2*s}:{105+2*s}], v7, {S(SWS)}, s55 offen offset:{s*528} sc1')
    e('s_waitcnt vmcnt(0)')
    e('v_max_f32 v9, v104, v106')
    for s in range(2,7): e(f'v_max_f32 v9, v9, v{104+2*s}')
    e('v_mov_b32 v10, 0'); e('v_mov_b32 v11, 0')
    for s in range(7):
        e(f'v_sub_f32 v12, v{104+2*s}, v9'); e('v_exp_f32 v12, v12'); e('s_nop 0')
        e(f'v_fmac_f32 v10, v12, v{96+s}'); e(f'v_fmac_f32 v11, v12, v{105+2*s}')
    e('v_rcp_f32 v11, v11'); e('s_nop 0'); e('v_mul_f32 v10, v10, v11')
    e('v_cvt_pk_bf16_f32 v10, v10, v10'); e('v_lshlrev_b32 v10, 16, v10')
    e('v_mul_u32_u24 v12, 144, v5'); e('v_lshl_add_u32 v12, v6, 2, v12'); e('ds_write_b32 v12, v10')
    e('v_mov_b32 v13, 0'); e('v_mul_u32_u24 v12, 144, v5'); e('ds_write_b32 v12, v13 offset:128')
    e('s_waitcnt lgkmcnt(0)')
    w0_end(l0)
    e('s_branch P3OUT')
    lab('P3B')
    l0=w0_begin()
    e('s_mov_b32 s55, 224'); wait('s55',1,32)
    e('v_cmp_gt_u32 vcc, 32, v2'); e('s_and_saveexec_b64 s[62:63], vcc')
    e('s_lshl_b32 s55, s56, 7'); e(f's_add_u32 s55, s55, {STATB}')
    e('v_lshlrev_b32 v5, 12, v3'); e('v_lshl_add_u32 v5, v4, 3, v5')
    e(f'buffer_load_dwordx2 v[96:97], v5, {S(SWS)}, s55 offen sc1')
    e('s_waitcnt vmcnt(0)')
    e('v_mov_b32 v98, v96'); rowred('v_max_f32',[98]); e('s_nop 1')
    e('v_sub_f32 v96, v96, v98'); e('v_exp_f32 v96, v96'); e('s_nop 0'); e('v_mul_f32 v97, v96, v97')
    rowred('v_add_f32',[97]); e('s_nop 1')
    e('v_rcp_f32 v97, v97'); e('s_nop 0'); e('v_mul_f32 v96, v96, v97')
    e('v_lshlrev_b32 v5, 2, v2'); e('ds_write_b32 v5, v96 offset:20480'); e('s_waitcnt lgkmcnt(0)')
    e('s_mov_b64 exec, s[62:63]')
    w0_end(l0)
    e('s_barrier')
    e('v_lshlrev_b32 v5, 2, v0')
    for b in range(2):
        e('s_lshl_b32 s55, s56, 15'); e(f's_add_u32 s55, s55, {PARTB+b*1048576}')
        for s in range(16):
            e(f'buffer_load_dword v{96+16*b+s}, v5, {S(SWS)}, s55 offen offset:{(s&1)*2048} sc1')
            if s&1: e('s_add_u32 s55, s55, 4096')
    e('v_mov_b32 v6, 0')
    for q in range(8): e(f'ds_read_b128 v[{128+4*q}:{131+4*q}], v6 offset:{20480+q*16}')
    for b in range(2):
        e(f'v_mov_b32 v{8+b}, 0')
        e(f's_waitcnt vmcnt({16 if b==0 else 0}) lgkmcnt(0)')
        for s in range(16): e(f'v_fmac_f32 v{8+b}, v{128+16*b+s}, v{96+16*b+s}')
        e(f'ds_write_b32 v5, v{8+b} offset:{20736+b*2048}')
    e('s_waitcnt lgkmcnt(0)'); e('s_barrier')
    e('v_lshrrev_b32 v5, 2, v0'); e('v_lshlrev_b32 v5, 2, v5'); e('v_and_b32 v7, 3, v0')
    for i in range(4):
        for b in range(2): e(f'ds_read_b32 v{96+2*i+b}, v5 offset:{20736+b*2048+i*512}')
    for k in range(16): e(f'v_mov_b32 v{112+k}, 0')
    e('s_waitcnt lgkmcnt(0)')
    for i in range(4):
        for j in range(4):
            e(f'v_lshlrev_b32 v8, 16, v{40+4*i+j}'); e(f'v_and_b32 v9, 0xffff0000, v{40+4*i+j}')
            for b in range(2):
                e(f'v_fmac_f32 v{112+b*8+2*j}, v{96+2*i+b}, v8'); e(f'v_fmac_f32 v{112+b*8+2*j+1}, v{96+2*i+b}, v9')
    for ror in (4,8):
        e('s_nop 1')
        for k in range(16): e(f'v_add_f32_dpp v{112+k}, v{112+k}, v{112+k} row_ror:{ror}'+DPP)
    e('v_lshrrev_b32 v5, 4, v0'); e('v_lshlrev_b32 v5, 8, v5'); e('v_lshl_add_u32 v5, v7, 6, v5')
    e('v_cmp_gt_u32 vcc, 4, v4'); e('s_and_saveexec_b64 s[62:63], vcc')
    for k in range(4): e(f'ds_write_b128 v5, v[{112+4*k}:{115+4*k}] offset:{24832+16*k}')
    e('s_mov_b64 exec, s[62:63]')
    e('s_waitcnt lgkmcnt(0)'); e('s_barrier')
    l0=w0_begin()
    e('v_lshlrev_b32 v5, 2, v0')
    for k in range(32): e(f'ds_read_b32 v{96+k}, v5 offset:{24832+256*k}')
    e('s_waitcnt lgkmcnt(0)')
    for k in range(1,32): e(f'v_add_f32 v96, v96, v{96+k}')
    e('v_cvt_pk_bf16_f32 v96, v96, v96'); e('v_lshlrev_b32 v96, 16, v96')
    e('v_lshlrev_b32 v5, 5, v3'); e('v_and_b32 v6, 7, v0'); e('v_lshl_add_u32 v5, v6, 2, v5')
    e('v_bfe_u32 v6, v0, 3, 1'); e('v_mul_u32_u24 v6, 144, v6'); e('v_add_u32 v5, v5, v6')
    e('ds_write_b32 v5, v96'); e('v_mov_b32 v97, 0'); e('ds_write_b32 v6, v97 offset:128'); e('s_waitcnt lgkmcnt(0)')
    w0_end(l0)
    lab('P3OUT')
    e('s_barrier')
    e('v_lshlrev_b32 v5, 2, v92')
    e('v_min_u32 v5, 8, v5')
    for i in range(11):
        for b in range(2): e(f'ds_read_b32 v{96+2*i+b}, v5 offset:{b*144+i*12}')
    for k in range(8): e(f'v_mov_b32 v{120+k}, 0')
    e('s_waitcnt vmcnt(0) lgkmcnt(0)')
    for i in range(11):
        for j in range(2):
            e(f'v_lshlrev_b32 v8, 16, v{16+2*i+j}'); e(f'v_and_b32 v9, 0xffff0000, v{16+2*i+j}')
            for b in range(2):
                e(f'v_fmac_f32 v{120+4*b+2*j}, v{96+2*i+b}, v8'); e(f'v_fmac_f32 v{121+4*b+2*j}, v{96+2*i+b}, v9')
    e('v_mul_u32_u24 v5, 4608, v92'); e('v_lshl_add_u32 v5, v93, 4, v5')
    e('ds_write_b128 v5, v[120:123] offset:1024'); e('ds_write_b128 v5, v[124:127] offset:3328')
    e('s_waitcnt lgkmcnt(0)'); e('s_barrier')
    e('v_cmp_gt_u32 vcc, 0x120, v0'); e('s_and_saveexec_b64 s[62:63], vcc'); l2=U('OSK'); e(f's_cbranch_execz {l2}')
    e('v_lshlrev_b32 v5, 4, v0')
    for g in range(3): e(f'ds_read_b128 v[{96+4*g}:{99+4*g}], v5 offset:{1024+4608*g}')
    e('s_waitcnt lgkmcnt(0)')
    for g in range(1,3):
        for k in range(4): e(f'v_add_f32 v{96+k}, v{96+k}, v{96+4*g+k}')
    e('s_mul_i32 s55, s2, 4608'); e(f's_add_u32 s55, s55, {OUTP}')
    e(f'buffer_store_dwordx4 v[96:99], v5, {S(SWS)}, s55 offen sc1')
    lab(l2); e('s_mov_b64 exec, s[62:63]')
    e('s_waitcnt vmcnt(0)'); e('s_barrier')
    l0=w0_begin()
    e('s_and_b32 s55, s2, 3'); e('s_lshl_b32 s55, s55, 2'); e('s_add_u32 s55, s55, 228'); signal('s55')
    w0_end(l0)
    e('s_cmp_ge_u32 s2, 36'); e('s_cbranch_scc1 END')
    l0=w0_begin()
    e('s_mov_b32 s55, 228'); wait('s55',4,64)
    w0_end(l0)
    e('s_barrier')
    e('s_cmp_ge_u32 s2, 18'); e('s_cselect_b32 s56, 1, 0')
    e('s_mul_i32 s57, s56, 18'); e('s_sub_u32 s57, s2, s57'); e('s_lshl_b32 s57, s57, 6')
    e('v_add_u32 v7, s57, v2')
    e('s_mul_i32 s55, s56, 589824'); e(f's_add_u32 s55, s55, {OUTP}')
    e('s_mov_b32 s58, 73728'); e('v_mul_lo_u32 v8, v1, s58'); e('v_lshl_add_u32 v8, v7, 2, v8')
    for k in range(16):
        e(f'buffer_load_dword v{96+k}, v8, {S(SWS)}, s55 offen sc1'); e('s_add_u32 s55, s55, 4608')
    e('s_waitcnt vmcnt(0)')
    for k in range(1,16): e(f'v_add_f32 v96, v96, v{96+k}')
    e('v_lshlrev_b32 v5, 2, v0'); e('ds_write_b32 v5, v96 offset:32768'); e('s_waitcnt lgkmcnt(0)'); e('s_barrier')
    e('s_cmp_lg_u32 s60, 0'); e('s_cbranch_scc1 END')
    for w in range(8): e(f'ds_read_b32 v{96+w}, v5 offset:{32768+256*w}')
    e('s_waitcnt lgkmcnt(0)')
    for w in range(1,8): e(f'v_add_f32 v96, v96, v{96+w}')
    e('v_cvt_pk_bf16_f32 v96, v96, v96')
    e('v_cmp_le_u32 vcc, 0x240, v7'); e('v_mov_b32 v6, 0x240'); e('s_nop 1'); e('v_cndmask_b32 v6, 0, v6, vcc')
    e('v_add_u32 v6, v6, v7'); e('s_mul_i32 s58, s56, 576'); e('v_add_u32 v6, s58, v6'); e('v_lshlrev_b32 v6, 1, v6')
    e(f'buffer_store_short v96, v6, {S(SOUT)}, 0 offen')

hdr=open(f'cdna_kernels/{NAME}.s.ref').read().split('\n')
hdr=[h for h in hdr if h.startswith(';') and '@launch' not in h and not h.startswith('; Override') and not h.startswith('; grid=ceil')]
L+=hdr
L+=['; @launch grid=(256,1,1) block=(512,1,1) lds=106496','.amdgcn_target "amdgcn-amd-amdhsa--gfx950"','.text']
body()
L+=['.section .rodata,"a"','.p2align 6',f'.amdhsa_kernel {NAME}_kernel','  .amdhsa_next_free_vgpr 256','  .amdhsa_next_free_sgpr 102','  .amdhsa_accum_offset 256',
    '  .amdhsa_group_segment_fixed_size 0','  .amdhsa_kernarg_size 112','  .amdhsa_user_sgpr_count 2','  .amdhsa_user_sgpr_kernarg_segment_ptr 1',
    '  .amdhsa_system_sgpr_workgroup_id_x 1','.end_amdhsa_kernel']
open(OUT,'w').write('\n'.join(L)+'\n')
```

```python
import struct, os
NAME='concat_heads__gqa_block_cached__compressed_kv_cla__decode'
OUT=os.environ.get('OUTF','') or f'cdna_kernels/{NAME}.s'
L=[]
def e(s): L.append('    '+s)
def lab(s): L.append(s+':')
def f32(x): return '0x%08x'%struct.unpack('<I',struct.pack('<f',x))[0]
CS=f32(1.4426950408889634/(128**0.5))
QA=0; QB=16384; QP=32768; PARTA=98304; STATB=368640; PARTB=393216; OUTP=4587520
WSSZ=8*1024*1024
DPP=' row_mask:0xf bank_mask:0xf'
HUGE='0x7fffff00'
SX,SW,SUK,SK,SV,SC,SWS,SDBG,SWO,SUV,SOUT=8,12,16,20,24,28,32,36,40,44,48
uid=[0]
STAMP=os.environ.get('STAMP','')=='1'
def stamp(i):
    if STAMP: e(f's_memrealtime s[{68+2*i}:{69+2*i}]')
def stamp_flush():
    if not STAMP: return
    l=U('SF'); e('s_cmp_lg_u32 s60, 0'); e(f's_cbranch_scc1 {l}')
    e('s_waitcnt lgkmcnt(0)'); e('s_mov_b64 exec, 1')
    e('s_lshl_b32 s55, s2, 7'); e('s_add_u32 s55, s55, 7340032'); e('v_mov_b32 v5, 0')
    for i in range(12):
        e(f'v_mov_b32 v6, s{68+2*i}'); e(f'buffer_store_dword v6, v5, {S(SWS)}, s55 offen offset:{4*i}')
    e('s_mov_b64 exec, -1')
    lab(l)

def U(p): uid[0]+=1; return f'{p}_{uid[0]}'
def srd(d, lo, size):
    e(f's_mov_b32 s{d}, s{lo}'); e(f's_and_b32 s{d+1}, s{lo+1}, 0xffff'); e(f's_mov_b32 s{d+2}, {size}'); e(f's_mov_b32 s{d+3}, 0x00020000')
def S(d): return f's[{d}:{d+3}]'
def rowred(op, regs):
    for ror in (8,4,2,1):
        e('s_nop 1')
        for r in regs: e(f'{op}_dpp v{r}, v{r}, v{r} row_ror:{ror}'+DPP)
def w0_begin():
    l=U('W0E'); e('s_cmp_lg_u32 s60, 0'); e(f's_cbranch_scc1 {l}'); return l
def w0_end(l): lab(l)
CB=0x780000
def signal(off_sgpr):
    e('s_mov_b64 s[62:63], exec'); e('s_mov_b64 exec, 1')
    e('v_mov_b32 v5, 1'); e(f'v_mov_b32 v6, {off_sgpr}'); e('v_lshlrev_b32 v6, 5, v6'); e(f'v_add_u32 v6, {CB}, v6')
    e(f'buffer_atomic_add v5, v6, {S(SWS)}, 0 offen')
    e('s_mov_b64 exec, s[62:63]')
def wait(off_sgpr, n, target, dbg=False):
    lp=U('POLL'); dn=U('PDONE')
    e('s_mov_b64 s[62:63], exec'); e(f's_mov_b64 exec, {(1<<n)-1}')
    if dbg: e('v_mov_b32 v6, 0')
    else:
        e('v_lshlrev_b32 v6, 2, v2'); e(f'v_add_u32 v6, {off_sgpr}, v6'); e('v_lshlrev_b32 v6, 5, v6'); e(f'v_add_u32 v6, {CB}, v6')
    e('s_mov_b32 s64, 0')
    lab(lp)
    e(f'buffer_load_dword v5, v6, {S(SDBG if dbg else SWS)}, 0 offen sc1')
    e('s_waitcnt vmcnt(0)')
    e(f'v_cmp_le_u32 vcc, {target}, v5')
    e('s_nop 3')
    e('s_cmp_eq_u64 vcc, exec'); e(f's_cbranch_scc1 {dn}')
    e('s_add_u32 s64, s64, 1'); e('s_cmp_gt_u32 s64, 0x20000'); e(f's_cbranch_scc1 {dn}')
    e('s_sleep 2'); e(f's_branch {lp}')
    lab(dn)
    e('s_mov_b64 exec, s[62:63]')
def init_counters():
    e(f's_add_u32 s100, s94, {CB}'); e('s_addc_u32 s101, s95, 0')
    l=U('INI'); e('s_cmp_lg_u32 s2, 0'); e(f's_cbranch_scc1 {l}'); e('s_cmp_lg_u32 s60, 0'); e(f's_cbranch_scc1 {l}')
    e('v_lshlrev_b32 v5, 7, v2'); e(f'v_add_u32 v5, {CB}, v5'); e('v_mov_b32 v6, 0')
    e(f'buffer_store_dword v6, v5, {S(SWS)}, 0 offen sc1'); e('s_waitcnt vmcnt(0)')
    e('s_mov_b64 exec, 1'); e('v_mov_b32 v5, 1'); e('v_mov_b32 v6, 0')
    e(f'buffer_atomic_add v5, v6, {S(SDBG)}, 0 offen'); e('s_mov_b64 exec, -1')
    lab(l)
def wait_init():
    wait('0',1,1,dbg=True)

def body():
    L.append(f'.globl {NAME}_kernel'); L.append('.p2align 8'); L.append(f'.type {NAME}_kernel,@function'); lab(f'{NAME}_kernel')
    e('s_cmp_ge_u32 s2, 256'); e('s_cbranch_scc1 END')
    e('s_load_dwordx16 s[68:83], s[0:1], 0'); e('s_load_dwordx8 s[84:91], s[0:1], 64'); e('s_load_dwordx4 s[92:95], s[0:1], 96')
    e('v_lshrrev_b32 v1, 6, v0'); e('v_and_b32 v2, 63, v0'); e('v_lshrrev_b32 v3, 4, v2'); e('v_and_b32 v4, 15, v2')
    for r in (12,13,14,15): e(f'v_mov_b32 v{r}, {HUGE}')
    e('v_readfirstlane_b32 s60, v1')
    e(f's_mov_b32 s61, {CS}')
    e('s_waitcnt lgkmcnt(0)')
    e('s_cmp_lt_u32 s2, 128')
    e('s_cselect_b64 s[4:5], s[68:69], s[78:79]'); e('s_cselect_b64 s[6:7], s[74:75], s[82:83]'); e('s_cselect_b64 s[52:53], s[76:77], s[88:89]')
    srd(SX,4,2304); srd(SW,6,576*8192); srd(SUK,84,512*8192); srd(SK,70,2*16*4096*256); srd(SV,72,2*16*4096*256)
    srd(SC,80,2*4096*1024); srd(SWS,94,WSSZ); srd(SDBG,92,256); srd(SWO,52,4096*1152); srd(SUV,86,512*8192); srd(SOUT,90,4608)
    init_counters()
    stamp(0)
    e('s_and_b32 s3, s2, 127'); e('s_lshl_b32 s54, s3, 6')
    e('v_lshrrev_b32 v7, 2, v0'); e('v_and_b32 v8, 3, v0')
    e('v_lshlrev_b32 v9, 13, v7'); e('v_lshl_add_u32 v9, v8, 4, v9'); e('v_add_u32 v9, s54, v9')
    e('v_lshlrev_b32 v10, 1, v7')
    e('s_mov_b32 s55, 0')
    for i in range(5):
        e(f'buffer_load_dwordx4 v[{16+4*i}:{19+4*i}], v9, {S(SW)}, s55 offen nt'); e('s_add_u32 s55, s55, 1048576')
    for i in range(5):
        for b in range(2): e(f'buffer_load_ushort v{36+2*i+b}, v10, {S(SX)}, 0 offen offset:{b*1152+i*256}')
    e('s_lshr_b32 s56, s2, 3'); e('s_and_b32 s57, s2, 7')
    e('v_lshrrev_b32 v11, 4, v0'); e('v_lshlrev_b32 v11, 13, v11'); e('v_lshl_add_u32 v11, v4, 4, v11')
    e('s_lshl_b32 s55, s57, 19'); e('s_lshl_b32 s58, s56, 8'); e('s_add_u32 s55, s55, s58')
    for i in range(2):
        e(f'buffer_load_dwordx4 v[{64+4*i}:{67+4*i}], v11, {S(SUK)}, s55 offen nt'); e('s_add_u32 s55, s55, 262144')
    e('s_cmp_ge_u32 s2, 192'); e('s_cbranch_scc1 ROLE_B')
    e('s_mul_hi_u32 s96, s2, 715827883'); e('s_mul_i32 s97, s96, 6'); e('s_sub_u32 s97, s2, s97')
    e('s_lshl_b32 s55, s96, 20'); e('s_mul_i32 s58, s97, 172032'); e('s_add_u32 s55, s55, s58')
    e('s_sub_u32 s58, s60, 1'); e('s_mul_i32 s58, s58, 24576'); e('s_add_u32 s55, s55, s58'); e('s_mov_b32 s98, 6')
    e('s_cmp_lg_u32 s60, 0'); e('s_cbranch_scc1 AROLE_OK')
    e('s_lshl_b32 s55, s96, 20'); e('s_add_u32 s55, s55, 1032192')
    e('s_cmp_eq_u32 s97, 0'); e('s_cselect_b32 s98, 4, 0')
    lab('AROLE_OK')
    e('v_lshlrev_b32 v13, 8, v4'); e('v_lshl_add_u32 v13, v3, 4, v13'); e('v_add_u32 v13, s55, v13')
    e('v_lshlrev_b32 v12, 4, v2'); e('v_add_u32 v12, s55, v12')
    e('s_branch PF_DONE')
    lab('ROLE_B')
    e('s_sub_u32 s96, s2, 192')
    e('s_lshl_b32 s55, s96, 17')
    e('s_sub_u32 s58, s60, 1'); e('s_max_i32 s58, s58, 0'); e('s_mul_i32 s58, s58, 9216'); e('s_add_u32 s55, s55, s58')
    e('v_lshlrev_b32 v12, 4, v2'); e('v_add_u32 v12, s55, v12')
    lab('PF_DONE')
    for k in range(16): e(f'v_mov_b32 v{46+k}, 0')
    e('s_waitcnt vmcnt(2)')
    lab('P1GO'); stamp(1)
    for i in range(10): e(f'v_lshlrev_b32 v{36+i}, 16, v{36+i}')
    for i in range(5):
        for j in range(4):
            e(f'v_lshlrev_b32 v62, 16, v{16+4*i+j}'); e(f'v_and_b32 v63, 0xffff0000, v{16+4*i+j}')
            for b in range(2):
                e(f'v_fmac_f32 v{46+b*8+2*j}, v{36+2*i+b}, v62'); e(f'v_fmac_f32 v{46+b*8+2*j+1}, v{36+2*i+b}, v63')
    for ror in (4,8):
        e('s_nop 1')
        for k in range(16): e(f'v_add_f32_dpp v{46+k}, v{46+k}, v{46+k} row_ror:{ror}'+DPP)
    e('v_lshrrev_b32 v5, 4, v0'); e('v_lshlrev_b32 v5, 8, v5'); e('v_lshl_add_u32 v5, v8, 6, v5')
    e('v_cmp_gt_u32 vcc, 4, v4'); e('s_and_saveexec_b64 s[62:63], vcc')
    for k in range(4): e(f'ds_write_b128 v5, v[{46+4*k}:{49+4*k}] offset:{16*k}')
    e('s_mov_b64 exec, s[62:63]')
    e('s_waitcnt lgkmcnt(0)'); e('s_barrier')
    l0=w0_begin()
    e('v_lshlrev_b32 v5, 2, v0')
    for k in range(32): e(f'ds_read_b32 v{16+k}, v5 offset:{256*k}')
    e('s_waitcnt lgkmcnt(0)')
    for k in range(1,32): e(f'v_add_f32 v16, v16, v{16+k}')
    e('v_cvt_pk_bf16_f32 v16, v16, v16')
    e('v_lshlrev_b32 v5, 4, v3'); e('v_and_b32 v6, 7, v0'); e('v_lshl_add_u32 v5, v6, 1, v5')
    e('v_bfe_u32 v6, v0, 3, 1'); e('v_lshl_add_u32 v5, v6, 13, v5')
    e('s_lshr_b32 s55, s2, 7'); e('s_lshl_b32 s55, s55, 14'); e('s_add_u32 s55, s55, s54')
    e(f'buffer_store_short v16, v5, {S(SWS)}, s55 offen sc1')
    e('s_waitcnt vmcnt(0)')
    e('s_lshr_b32 s55, s2, 3'); e('s_lshl_b32 s55, s55, 2')
    e('s_sub_u32 s58, s2, 128'); e('s_lshr_b32 s58, s58, 2'); e('s_lshl_b32 s58, s58, 2'); e('s_add_u32 s58, s58, 64')
    e('s_cmp_lt_u32 s2, 128'); e('s_cselect_b32 s55, s55, s58')
    e('s_mov_b32 s59, s55'); wait_init(); e('s_mov_b32 s55, s59')
    signal('s55'); stamp(2)
    e('s_lshl_b32 s55, s56, 2'); e('s_add_u32 s55, s55, 64')
    wait('s55',1,4); stamp(3)
    e('v_lshlrev_b32 v5, 13, v3'); e('v_lshl_add_u32 v5, v4, 4, v5')
    e('s_lshl_b32 s55, s56, 8'); e(f's_add_u32 s55, s55, {QB}')
    e(f'buffer_load_dwordx4 v[16:19], v5, {S(SWS)}, s55 offen sc1')
    e('v_lshlrev_b32 v6, 4, v2')
    e('s_waitcnt vmcnt(0)'); e('ds_write_b128 v6, v[16:19] offset:8192'); e('s_waitcnt lgkmcnt(0)')
    w0_end(l0)
    e('s_barrier')
    e('v_lshlrev_b32 v5, 4, v4')
    e('ds_read_b128 v[16:19], v5 offset:8192'); e('ds_read_b128 v[20:23], v5 offset:8448')
    for k in range(4): e(f'v_mov_b32 v{46+k}, 0')
    e('s_waitcnt vmcnt(0) lgkmcnt(0)')
    lab('P1BGO')
    for k in range(4):
        for i in range(2):
            for b in range(2): e(f'v_dot2_f32_bf16 v{46+2*i+b}, v{64+4*i+k}, v{16+4*b+k}, v{46+2*i+b}')
    e('s_nop 3')
    rowred('v_add_f32',[46,47,48,49])
    e('s_nop 1')
    e('v_lshrrev_b32 v5, 4, v0'); e('v_lshlrev_b32 v5, 2, v5')
    for i in range(2):
        for b in range(2): e(f'ds_write_b32 v5, v{46+2*i+b} offset:{9216+b*256+i*128}')
    e('s_waitcnt lgkmcnt(0)'); e('s_barrier')
    l0=w0_begin()
    e('v_lshlrev_b32 v5, 2, v2')
    e('ds_read_b32 v16, v5 offset:9216'); e('ds_read_b32 v17, v5 offset:9472'); e('s_waitcnt lgkmcnt(0)')
    e('v_cvt_pk_bf16_f32 v16, v16, v16'); e('v_cvt_pk_bf16_f32 v17, v17, v17')
    e('s_lshl_b32 s55, s56, 10'); e('s_lshl_b32 s58, s57, 7'); e('s_add_u32 s55, s55, s58'); e(f's_add_u32 s55, s55, {QP}')
    e('s_add_u32 s58, s55, 32768')
    e('v_lshlrev_b32 v5, 1, v2')
    e(f'buffer_store_short v16, v5, {S(SWS)}, s55 offen sc1'); e(f'buffer_store_short v17, v5, {S(SWS)}, s58 offen sc1')
    e('s_waitcnt vmcnt(0)')
    e('s_and_b32 s55, s2, 7'); e('s_lshl_b32 s55, s55, 2'); e('s_add_u32 s55, s55, 192')
    signal('s55'); stamp(4)
    w0_end(l0)
    e('s_cmp_ge_u32 s2, 192'); e('s_cbranch_scc1 ATT_B')
    attA()
    e('s_branch P3')
    lab('ATT_B')
    attB()
    lab('P3')
    p3()
    stamp(11)
    lab('ENDS'); stamp_flush()
    lab('END'); e('s_endpgm')

OOB='0x7fff0000'
def kissue():
    for t in range(6):
        e(f's_cmp_gt_u32 s98, {t}'); e(f's_mov_b32 s55, {t*4096}'); e(f's_cselect_b32 s55, s55, {OOB}')
        for ks in range(4):
            r=64+16*t+4*ks
            e(f'buffer_load_dwordx4 v[{r}:{r+3}], v13, {S(SK)}, s55 offen offset:{ks*64} nt')
def vissue():
    for i in range(24):
        if i%4==0:
            e(f's_cmp_gt_u32 s98, {i//4}'); e(f's_mov_b32 s55, {(i//4)*4096}'); e(f's_cselect_b32 s55, s55, {OOB}')
        e(f'buffer_load_dwordx4 v[{160+4*i}:{163+4*i}], v12, {S(SV)}, s55 offen offset:{(i%4)*1024} nt')
def cissue():
    for p in range(2):
        for i in range(10):
            if i%4==0 or i==9: e(f's_mov_b32 s55, {p*65536+(i//4)*4096}')
            if i==9: e('s_cmp_eq_u32 s60, 7'); e(f's_cselect_b32 s55, s55, {OOB}')
            r=64+40*p+4*i
            e(f'buffer_load_dwordx4 v[{r}:{r+3}], v12, {S(SC)}, s55 offen offset:{(i%4)*1024} nt')

def late_loads():
    e('s_mov_b32 s55, 29826162'); e('v_mul_hi_u32 v92, v0, s55')
    e('v_mul_u32_u24 v93, 144, v92'); e('v_sub_u32 v93, v0, v93')
    e('v_mul_u32_u24 v5, 1152, v92'); e('v_lshl_add_u32 v5, v93, 3, v5')
    e('v_cmp_gt_u32 vcc, 0x1b0, v0'); e(f'v_mov_b32 v6, {HUGE}'); e('s_nop 1'); e('v_cndmask_b32 v5, v6, v5, vcc')
    e('s_mul_i32 s55, s3, 36864')
    for i in range(11):
        e(f'buffer_load_dwordx2 v[{16+2*i}:{17+2*i}], v5, {S(SWO)}, s55 offen nt'); e('s_add_u32 s55, s55, 3456')
    e('v_lshrrev_b32 v5, 2, v0'); e('v_lshlrev_b32 v5, 13, v5'); e('v_and_b32 v6, 3, v0'); e('v_lshl_add_u32 v5, v6, 4, v5')
    e('s_cmp_lt_u32 s2, 128'); e(f's_cselect_b32 s55, {HUGE}, 0'); e('v_add_u32 v5, s55, v5')
    e('s_lshl_b32 s55, s3, 6')
    for i in range(4):
        e(f'buffer_load_dwordx4 v[{40+4*i}:{43+4*i}], v5, {S(SUV)}, s55 offen nt'); e('s_add_u32 s55, s55, 1048576')

def attA():
    e('s_cmp_eq_u32 s60, 0'); e('s_cbranch_scc1 AK_SKIP')
    kissue()
    lab('AK_SKIP')
    l0=w0_begin()
    e('s_and_b32 s55, s96, 15'); e('s_lshl_b32 s55, s55, 2')
    wait('s55',1,8); stamp(5)
    kissue()
    w0_end(l0); e('s_barrier')
    e('v_lshlrev_b32 v5, 8, v4'); e('v_lshl_add_u32 v5, v3, 4, v5'); e('s_lshl_b32 s55, s96, 9')
    e('v_cmp_gt_u32 vcc, 2, v4'); e(f'v_mov_b32 v6, {HUGE}'); e('s_nop 1'); e('v_cndmask_b32 v5, v6, v5, vcc')
    for ks in range(4): e(f'buffer_load_dwordx4 v[{16+4*ks}:{19+4*ks}], v5, {S(SWS)}, s55 offen offset:{ks*64} sc1')
    vissue()
    e('s_waitcnt vmcnt(24)')
    for t in range(6):
        for ks in range(4):
            r=64+16*t+4*ks
            c='0' if ks==0 else f'v[{32+4*t}:{35+4*t}]'
            e(f'v_mfma_f32_16x16x32_bf16 v[{32+4*t}:{35+4*t}], v[{16+4*ks}:{19+4*ks}], v[{r}:{r+3}], {c}')
    e('s_nop 7'); e('s_nop 3'); stamp(6)
    for t in range(6):
        e(f's_cmp_gt_u32 s98, {t}'); e('s_cselect_b32 s55, 0, 0xff800000')
        for h in range(2): e(f'v_add_f32 v{32+4*t+h}, s55, v{32+4*t+h}')
    for h in range(2):
        e(f'v_max3_f32 v{8+h}, v{32+h}, v{36+h}, v{40+h}'); e(f'v_max3_f32 v{8+h}, v{8+h}, v{44+h}, v{48+h}'); e(f'v_max_f32 v{8+h}, v{8+h}, v{52+h}')
        e(f'v_max_f32 v{8+h}, 0xf149f2ca, v{8+h}')
    rowred('v_max_f32',[8,9])
    e('s_nop 1')
    for h in range(2):
        for t in range(6):
            e(f'v_sub_f32 v{32+4*t+h}, v{32+4*t+h}, v{8+h}'); e(f'v_mul_f32 v{32+4*t+h}, s61, v{32+4*t+h}')
    for h in range(2):
        for t in range(6): e(f'v_exp_f32 v{32+4*t+h}, v{32+4*t+h}')
    e('s_nop 0')
    for h in range(2):
        e(f'v_add_f32 v{10+h}, v{32+h}, v{36+h}'); e(f'v_add_f32 v7, v{40+h}, v{44+h}'); e(f'v_add_f32 v{10+h}, v{10+h}, v7'); e(f'v_add_f32 v7, v{48+h}, v{52+h}'); e(f'v_add_f32 v{10+h}, v{10+h}, v7')
    rowred('v_add_f32',[10,11])
    e('v_mul_u32_u24 v5, 768, v1'); e('v_lshl_add_u32 v5, v2, 3, v5')
    e('v_cmp_gt_u32 vcc, 16, v2'); e('s_and_saveexec_b64 s[62:63], vcc')
    for t in range(6): e(f'ds_write_b64 v5, v[{32+4*t}:{33+4*t}] offset:{10240+t*128}')
    e('v_lshlrev_b32 v6, 4, v1'); e('ds_write_b128 v6, v[8:11] offset:16384')
    e('s_mov_b64 exec, s[62:63]')
    for k in range(16): e(f'v_mov_b32 v{56+k}, 0')
    e('s_waitcnt lgkmcnt(0)')
    e('v_mul_u32_u24 v5, 768, v1'); e('v_lshl_add_u32 v5, v3, 3, v5')
    for half in range(2):
        for ii in range(12): e(f'ds_read_b64 v[{96+2*ii}:{97+2*ii}], v5 offset:{10240+(half*12+ii)*32}')
        for ii in range(12):
            i=half*12+ii; pr=96+2*ii; vr=160+4*i
            e(f's_waitcnt vmcnt({23-i}) lgkmcnt({11-ii})')
            for j in range(4):
                e(f'v_lshlrev_b32 v6, 16, v{vr+j}'); e(f'v_and_b32 v7, 0xffff0000, v{vr+j}')
                e(f'v_pk_fma_f32 v[{56+2*j}:{57+2*j}], v[6:7], v[{pr}:{pr+1}], v[{56+2*j}:{57+2*j}] op_sel:[0,0,0] op_sel_hi:[1,0,1]')
                e(f'v_pk_fma_f32 v[{64+2*j}:{65+2*j}], v[6:7], v[{pr}:{pr+1}], v[{64+2*j}:{65+2*j}] op_sel:[0,1,0] op_sel_hi:[1,1,1]')
    late_loads()
    e('v_lshl_add_u32 v5, v1, 2, v3'); e('v_lshlrev_b32 v5, 10, v5'); e('v_lshl_add_u32 v5, v4, 5, v5')
    for h in range(2):
        e(f'ds_write_b128 v5, v[{56+8*h}:{59+8*h}] offset:{17408+512*h}'); e(f'ds_write_b128 v5, v[{60+8*h}:{63+8*h}] offset:{17408+512*h+16}')
    e('s_waitcnt lgkmcnt(0)'); e('s_barrier')
    lsk=U('ASK')
    e('s_cmp_ge_u32 s60, 4'); e(f's_cbranch_scc1 {lsk}')
    e('v_lshrrev_b32 v5, 7, v0'); e('v_and_b32 v6, 127, v0'); e('v_lshlrev_b32 v7, 2, v5')
    for w in range(8):
        e(f'ds_read_b32 v{96+w}, v7 offset:{16384+16*w}'); e(f'ds_read_b32 v{104+w}, v7 offset:{16384+16*w+8}')
    e('v_lshlrev_b32 v8, 9, v5'); e('v_lshl_add_u32 v8, v6, 2, v8')
    for wg in range(32): e(f'ds_read_b32 v{112+wg}, v8 offset:{17408+1024*wg}')
    e('s_waitcnt lgkmcnt(0)')
    e('v_max_f32 v9, v96, v97')
    for w in range(2,8): e(f'v_max_f32 v9, v9, v{96+w}')
    for w in range(8):
        e(f'v_sub_f32 v{96+w}, v{96+w}, v9'); e(f'v_mul_f32 v{96+w}, s61, v{96+w}'); e(f'v_exp_f32 v{96+w}, v{96+w}')
    e('v_mov_b32 v10, 0'); e('v_mov_b32 v11, 0')
    for w in range(8):
        e(f'v_add_f32 v12, v{112+4*w}, v{113+4*w}'); e(f'v_add_f32 v13, v{114+4*w}, v{115+4*w}'); e('v_add_f32 v12, v12, v13')
        e(f'v_fmac_f32 v10, v{96+w}, v12'); e(f'v_fmac_f32 v11, v{96+w}, v{104+w}')
    e('v_mul_f32 v9, s61, v9')
    e('s_mul_i32 s55, s96, 12'); e('s_add_u32 s55, s55, s97'); e('s_mul_i32 s55, s55, 528'); e(f's_add_u32 s55, s55, {PARTA}')
    e('v_mul_u32_u24 v12, 3168, v5'); e('v_lshl_add_u32 v12, v6, 2, v12')
    e(f'buffer_store_dword v10, v12, {S(SWS)}, s55 offen sc1')
    e('v_cmp_eq_u32 vcc, 0, v6'); e('s_and_saveexec_b64 s[62:63], vcc'); l2=U('ASK2'); e(f's_cbranch_execz {l2}')
    e('v_mov_b32 v10, v9')
    e(f'buffer_store_dwordx2 v[10:11], v12, {S(SWS)}, s55 offen offset:512 sc1')
    lab(l2); e('s_mov_b64 exec, s[62:63]')
    lab(lsk)
    e('s_waitcnt vmcnt(0)'); e('s_barrier')
    l0=w0_begin()
    e('s_and_b32 s55, s96, 15'); e('s_lshl_b32 s55, s55, 2'); signal('s55'); stamp(7)
    w0_end(l0)

PBUF=0; SMAX=4608; LSUM=5120; QL=5632; CT=38912
def attB():
    e('s_cmp_eq_u32 s60, 0'); e('s_cbranch_scc1 BC_SKIP')
    cissue()
    lab('BC_SKIP')
    l0=w0_begin()
    e('s_mov_b32 s55, 192'); wait('s55',8,32); stamp(5)
    e('s_lshr_b32 s55, s96, 5'); e('s_lshl_b32 s55, s55, 15'); e(f's_add_u32 s55, s55, {QP}')
    e('v_lshlrev_b32 v5, 4, v2')
    for h in range(32):
        e(f'buffer_load_dwordx4 v[{64+4*h}:{67+4*h}], v5, {S(SWS)}, s55 offen offset:{(h%4)*1024} sc1')
        if h%4==3: e('s_add_u32 s55, s55, 4096')
    e(f'v_add_u32 v6, {QL}, v5')
    for h in range(32):
        e(f's_waitcnt vmcnt({31-h})'); e(f'ds_write_b128 v6, v[{64+4*h}:{67+4*h}] offset:{h*1040}')
    w0_end(l0)
    e('v_subrev_u32 v6, 1, v1'); e('v_max_i32 v6, 0, v6'); e('v_mul_u32_u24 v6, 9360, v6'); e('v_lshl_add_u32 v6, v2, 4, v6'); e(f'v_add_u32 v6, {CT}, v6')
    e('v_and_b32 v7, 1, v1'); e('v_lshrrev_b32 v8, 1, v1')
    e('v_lshl_add_u32 v9, v7, 4, v4'); e('v_mul_u32_u24 v9, 1040, v9'); e('v_lshl_add_u32 v9, v3, 4, v9'); e(f'v_add_u32 v9, {QL}, v9')
    e('v_lshl_add_u32 v10, v8, 4, v4'); e('v_mul_u32_u24 v10, 1040, v10'); e('v_lshl_add_u32 v10, v3, 4, v10'); e(f'v_add_u32 v10, {CT}, v10')
    e('v_lshlrev_b32 v11, 7, v8'); e('v_lshl_add_u32 v11, v7, 6, v11'); e('v_lshl_add_u32 v11, v3, 4, v11')
    e('v_lshlrev_b32 v16, 4, v3')
    e('v_lshl_add_u32 v17, v7, 2, v3'); e('v_mul_u32_u24 v17, 576, v17'); e('v_lshl_add_u32 v18, v8, 4, v4'); e('v_lshl_add_u32 v17, v18, 1, v17')
    e('v_mul_u32_u24 v18, 144, v4'); e('v_lshl_add_u32 v18, v3, 4, v18')
    e('v_lshrrev_b32 v19, 2, v4'); e('v_lshl_add_u32 v19, v3, 3, v19'); e('v_mul_u32_u24 v19, 1040, v19')
    e('v_and_b32 v20, 3, v4'); e('v_lshl_add_u32 v19, v20, 3, v19'); e('v_lshl_add_u32 v19, v1, 7, v19'); e(f'v_add_u32 v19, {CT}, v19')
    for k in range(8): e(f'v_mov_b32 v{20+k}, 0xff800000')
    for k in range(4): e(f'v_mov_b32 v{28+k}, 0')
    for k in range(32): e(f'v_mov_b32 v{224+k}, 0')
    for p in range(2):
        e(f's_waitcnt vmcnt({10-10*p})')
        e('s_barrier')
        lw=U('CW'); e('s_cmp_eq_u32 s60, 0'); e(f's_cbranch_scc1 {lw}')
        for i in range(9): e(f'ds_write_b128 v6, v[{64+40*p+4*i}:{67+40*p+4*i}] offset:{i*1040}')
        e('s_cmp_lg_u32 s60, 7'); e(f's_cbranch_scc1 {lw}')
        e(f'ds_write_b128 v6, v[{64+40*p+36}:{67+40*p+36}] offset:{9*1040}')
        lab(lw)
        e('s_waitcnt lgkmcnt(0)'); e('s_barrier')
        if p==0: stamp(6)
        if p==1: stamp(10)
        for half in range(4):
            for k in range(4):
                ks=half*4+k
                e(f'ds_read_b128 v[{32+8*k}:{35+8*k}], v9 offset:{ks*64}'); e(f'ds_read_b128 v[{36+8*k}:{39+8*k}], v10 offset:{ks*64}')
            for k in range(4):
                ks=half*4+k
                e(f's_waitcnt lgkmcnt({6-2*k})')
                c='0' if ks==0 else 'v[12:15]'
                e(f'v_mfma_f32_16x16x32_bf16 v[12:15], v[{32+8*k}:{35+8*k}], v[{36+8*k}:{39+8*k}], {c}')
            e('s_nop 3')
        e('s_nop 7'); e('s_nop 3')
        for r in range(4): e(f'v_mov_b32 v{32+r}, v{12+r}')
        rowred('v_max_f32',[32,33,34,35])
        e('s_nop 1')
        e(f'ds_write_b128 v11, v[32:35] offset:{SMAX}')
        e('s_waitcnt lgkmcnt(0)'); e('s_barrier')
        for mt in range(2):
            for nt in range(4): e(f'ds_read_b128 v[{32+16*mt+4*nt}:{35+16*mt+4*nt}], v16 offset:{SMAX+nt*128+mt*64}')
        e('s_waitcnt lgkmcnt(0)')
        for mt in range(2):
            for r in range(4):
                b0=32+16*mt+r
                e(f'v_max_f32 v{b0}, v{b0}, v{b0+4}'); e(f'v_max3_f32 v{b0}, v{b0}, v{b0+8}, v{b0+12}')
                e(f'v_max_f32 v{b0}, v{b0}, v{20+4*mt+r}')
                e(f'v_sub_f32 v{b0+4}, v{20+4*mt+r}, v{b0}'); e(f'v_mul_f32 v{b0+4}, s61, v{b0+4}'); e(f'v_exp_f32 v{b0+4}, v{b0+4}')
                e(f'v_mov_b32 v{20+4*mt+r}, v{b0}')
        e('v_cmp_eq_u32 vcc, 1, v7'); e('s_nop 1')
        for r in range(4):
            e(f'v_cndmask_b32 v{40+r}, v{20+r}, v{24+r}, vcc'); e(f'v_cndmask_b32 v{44+r}, v{36+r}, v{52+r}, vcc')
        for r in range(4):
            e(f'v_sub_f32 v{12+r}, v{12+r}, v{40+r}'); e(f'v_mul_f32 v{12+r}, s61, v{12+r}'); e(f'v_exp_f32 v{12+r}, v{12+r}')
        e('s_nop 0')
        for r in range(4):
            e(f'v_fma_f32 v{28+r}, v{28+r}, v{44+r}, v{12+r}'); e(f'v_cvt_pk_bf16_f32 v{40+r}, v{12+r}, v{12+r}')
        for r in range(4): e(f'ds_write_b16 v17, v{40+r} offset:{PBUF+144*r}')
        for mt in range(2):
            for n in range(4):
                for r in range(4): e(f'v_mul_f32 v{224+(mt*4+n)*4+r}, v{36+16*mt+r}, v{224+(mt*4+n)*4+r}')
        e('s_waitcnt lgkmcnt(0)'); e('s_barrier')
        for mt in range(2):
            for ks in range(2): e(f'ds_read_b128 v[{32+(mt*2+ks)*4}:{35+(mt*2+ks)*4}], v18 offset:{PBUF+mt*2304+ks*64}')
        for grp in range(2):
            for nn in range(2):
                n=grp*2+nn
                for ks in range(2):
                    r=48+nn*8+ks*4
                    e(f'ds_read_b64_tr_b16 v[{r}:{r+1}], v19 offset:{ks*32*1040+n*32}')
                    e(f'ds_read_b64_tr_b16 v[{r+2}:{r+3}], v19 offset:{ks*32*1040+4*1040+n*32}')
            for nn in range(2):
                n=grp*2+nn
                e(f's_waitcnt lgkmcnt({4-4*nn})')
                for ks in range(2):
                    for mt in range(2):
                        a_=224+(mt*4+n)*4
                        e(f'v_mfma_f32_16x16x32_bf16 v[{a_}:{a_+3}], v[{32+(mt*2+ks)*4}:{35+(mt*2+ks)*4}], v[{48+nn*8+ks*4}:{51+nn*8+ks*4}], v[{a_}:{a_+3}]')
            e('s_nop 3')
        e('s_nop 7'); e('s_nop 3')
    stamp(11)
    rowred('v_add_f32',[28,29,30,31])
    e('s_nop 1')
    e(f'ds_write_b128 v11, v[28:31] offset:{LSUM}')
    e('s_lshr_b32 s55, s96, 5'); e('s_lshl_b32 s55, s55, 21'); e('s_and_b32 s58, s96, 31'); e('s_lshl_b32 s58, s58, 11'); e('s_add_u32 s55, s55, s58'); e(f's_add_u32 s55, s55, {PARTB}')
    e('s_barrier')
    e('v_mul_u32_u24 v32, 8256, v3'); e('v_lshl_add_u32 v32, v1, 8, v32'); e('v_lshl_add_u32 v32, v4, 2, v32'); e(f'v_add_u32 v32, {CT}, v32')
    for mt in range(2):
        for r in range(4):
            for n in range(4): e(f'ds_write_b32 v32, v{224+(mt*4+n)*4+r} offset:{(mt*16+r)*2064+n*64}')
    e('s_waitcnt lgkmcnt(0)'); e('s_barrier')
    e('v_lshrrev_b32 v33, 7, v0'); e('v_and_b32 v34, 127, v0')
    e('v_mul_u32_u24 v35, 2064, v33'); e('v_lshl_add_u32 v35, v34, 4, v35'); e(f'v_add_u32 v35, {CT}, v35')
    e('v_lshlrev_b32 v36, 16, v33'); e('v_lshl_add_u32 v36, v34, 4, v36')
    for k in range(8): e(f'ds_read_b128 v[{64+4*k}:{67+4*k}], v35 offset:{k*4*2064}')
    for k in range(8):
        e(f's_waitcnt lgkmcnt({7-k})'); e(f's_add_u32 s58, s55, {k*4*65536}')
        e(f'buffer_store_dwordx4 v[{64+4*k}:{67+4*k}], v36, {S(SWS)}, s58 offen sc1')
    lsk=U('BSK')
    e('s_cmp_ge_u32 s60, 2'); e(f's_cbranch_scc1 {lsk}')
    e('v_lshlrev_b32 v33, 6, v7'); e('v_lshl_add_u32 v33, v3, 4, v33')
    for nt in range(4): e(f'ds_read_b128 v[{40+4*nt}:{43+4*nt}], v33 offset:{LSUM+nt*128}')
    e('s_waitcnt lgkmcnt(0)')
    e('s_lshr_b32 s55, s96, 5'); e('s_lshl_b32 s55, s55, 13'); e('s_and_b32 s58, s96, 31'); e('s_lshl_b32 s58, s58, 3'); e('s_add_u32 s55, s55, s58'); e(f's_add_u32 s55, s55, {STATB}')
    e('v_lshl_add_u32 v34, v7, 2, v3'); e('v_lshlrev_b32 v34, 10, v34')
    e('v_cmp_eq_u32 s[66:67], 0, v4')
    for r in range(4):
        e('v_cmp_eq_u32 vcc, 1, v7'); e('s_nop 1')
        e(f'v_cndmask_b32 v36, v{20+r}, v{24+r}, vcc'); e('v_mul_f32 v36, s61, v36')
        e(f'v_add_f32 v37, v{40+r}, v{44+r}'); e(f'v_add_f32 v38, v{48+r}, v{52+r}'); e('v_add_f32 v37, v37, v38')
        e('s_mov_b64 s[62:63], exec'); e('s_and_b64 exec, exec, s[66:67]')
        e(f'buffer_store_dwordx2 v[36:37], v34, {S(SWS)}, s55 offen offset:{r*256} sc1')
        e('s_nop 1'); e('s_mov_b64 exec, s[62:63]')
    lab(lsk)
    e('s_waitcnt vmcnt(0)'); e('s_barrier')
    l0=w0_begin()
    e('s_mov_b32 s55, 224'); signal('s55'); stamp(7)
    w0_end(l0)
    late_loads()

def p3():
    e('s_lshr_b32 s56, s3, 2'); e('s_and_b32 s57, s3, 3')
    e('s_cmp_ge_u32 s2, 128'); e('s_cbranch_scc1 P3B')
    l0=w0_begin()
    e('s_lshr_b32 s55, s56, 1'); e('s_lshl_b32 s55, s55, 2'); wait('s55',1,20); stamp(8)
    e('v_lshrrev_b32 v5, 5, v0'); e('v_and_b32 v6, 31, v0')
    e('s_mul_i32 s55, s56, 3168'); e(f's_add_u32 s55, s55, {PARTA}')
    e('s_mov_b32 s58, 101376'); e('v_mul_lo_u32 v7, v5, s58')
    e('s_lshl_b32 s58, s57, 7'); e('v_lshl_add_u32 v8, v6, 2, v7'); e('v_add_u32 v8, s58, v8'); e('v_add_u32 v7, 0x200, v7')
    for s in range(6):
        e(f'buffer_load_dword v{96+s}, v8, {S(SWS)}, s55 offen offset:{s*528} sc1')
        e(f'buffer_load_dwordx2 v[{104+2*s}:{105+2*s}], v7, {S(SWS)}, s55 offen offset:{s*528} sc1')
    e('s_waitcnt vmcnt(0)')
    e('v_max_f32 v9, v104, v106')
    for s in range(2,6): e(f'v_max_f32 v9, v9, v{104+2*s}')
    e('v_mov_b32 v10, 0'); e('v_mov_b32 v11, 0')
    for s in range(6):
        e(f'v_sub_f32 v12, v{104+2*s}, v9'); e('v_exp_f32 v12, v12'); e('s_nop 0')
        e(f'v_fmac_f32 v10, v12, v{96+s}'); e(f'v_fmac_f32 v11, v12, v{105+2*s}')
    e('v_rcp_f32 v11, v11'); e('s_nop 0'); e('v_mul_f32 v10, v10, v11')
    e('v_cvt_pk_bf16_f32 v10, v10, v10'); e('v_lshlrev_b32 v10, 16, v10')
    e('v_mul_u32_u24 v12, 144, v5'); e('v_lshl_add_u32 v12, v6, 2, v12'); e('ds_write_b32 v12, v10')
    e('v_mov_b32 v13, 0'); e('v_mul_u32_u24 v12, 144, v5'); e('ds_write_b32 v12, v13 offset:128')
    e('s_waitcnt lgkmcnt(0)')
    w0_end(l0)
    e('s_branch P3OUT')
    lab('P3B')
    l0=w0_begin()
    e('s_mov_b32 s55, 224'); wait('s55',1,64); stamp(8)
    w0_end(l0); e('s_barrier')
    e('s_lshl_b32 s55, s56, 8'); e(f's_add_u32 s55, s55, {STATB}')
    e('v_lshrrev_b32 v7, 5, v2'); e('v_lshlrev_b32 v5, 13, v7'); e('v_and_b32 v7, 31, v2'); e('v_lshl_add_u32 v5, v7, 3, v5')
    e(f'buffer_load_dwordx2 v[160:161], v5, {S(SWS)}, s55 offen sc1')
    e('v_lshlrev_b32 v5, 2, v0')
    for b in range(2):
        e('s_lshl_b32 s55, s56, 16'); e(f's_add_u32 s55, s55, {PARTB+b*2097152}')
        for s in range(32):
            e(f'buffer_load_dword v{96+32*b+s}, v5, {S(SWS)}, s55 offen offset:{(s&1)*2048} sc1')
            if s&1: e('s_add_u32 s55, s55, 4096')
    e('s_waitcnt vmcnt(63)')
    e('v_mov_b32 v162, v160'); rowred('v_max_f32',[162]); e('s_nop 1')
    e('ds_swizzle_b32 v163, v162 offset:0x401F'); e('s_waitcnt lgkmcnt(0)'); e('v_max_f32 v162, v162, v163')
    e('v_sub_f32 v160, v160, v162'); e('v_exp_f32 v160, v160'); e('s_nop 0'); e('v_mul_f32 v161, v160, v161')
    rowred('v_add_f32',[161]); e('s_nop 1')
    e('ds_swizzle_b32 v163, v161 offset:0x401F'); e('s_waitcnt lgkmcnt(0)'); e('v_add_f32 v161, v161, v163')
    e('v_rcp_f32 v161, v161'); e('s_nop 0'); e('v_mul_f32 v160, v160, v161')
    e('v_lshlrev_b32 v7, 2, v2'); e('v_lshl_add_u32 v7, v1, 8, v7'); e('ds_write_b32 v7, v160 offset:36864'); e('s_waitcnt lgkmcnt(0)')
    e('v_lshlrev_b32 v6, 8, v1')
    for q in range(16): e(f'ds_read_b128 v[{164+4*q}:{167+4*q}], v6 offset:{36864+q*16}')
    for b in range(2):
        e(f'v_mov_b32 v{8+b}, 0')
        e(f's_waitcnt vmcnt({32 if b==0 else 0}) lgkmcnt(0)')
        for s in range(32): e(f'v_fmac_f32 v{8+b}, v{164+32*b+s}, v{96+32*b+s}')
        e(f'ds_write_b32 v5, v{8+b} offset:{20736+b*2048}')
    e('s_waitcnt lgkmcnt(0)'); e('s_barrier')
    e('v_lshrrev_b32 v5, 2, v0'); e('v_lshlrev_b32 v5, 2, v5'); e('v_and_b32 v7, 3, v0')
    for i in range(4):
        for b in range(2): e(f'ds_read_b32 v{96+2*i+b}, v5 offset:{20736+b*2048+i*512}')
    for k in range(16): e(f'v_mov_b32 v{112+k}, 0')
    e('s_waitcnt lgkmcnt(0)')
    for i in range(4):
        for j in range(4):
            e(f'v_lshlrev_b32 v8, 16, v{40+4*i+j}'); e(f'v_and_b32 v9, 0xffff0000, v{40+4*i+j}')
            for b in range(2):
                e(f'v_fmac_f32 v{112+b*8+2*j}, v{96+2*i+b}, v8'); e(f'v_fmac_f32 v{112+b*8+2*j+1}, v{96+2*i+b}, v9')
    for ror in (4,8):
        e('s_nop 1')
        for k in range(16): e(f'v_add_f32_dpp v{112+k}, v{112+k}, v{112+k} row_ror:{ror}'+DPP)
    e('v_lshrrev_b32 v5, 4, v0'); e('v_lshlrev_b32 v5, 8, v5'); e('v_lshl_add_u32 v5, v7, 6, v5')
    e('v_cmp_gt_u32 vcc, 4, v4'); e('s_and_saveexec_b64 s[62:63], vcc')
    for k in range(4): e(f'ds_write_b128 v5, v[{112+4*k}:{115+4*k}] offset:{24832+16*k}')
    e('s_mov_b64 exec, s[62:63]')
    e('s_waitcnt lgkmcnt(0)'); e('s_barrier')
    l0=w0_begin()
    e('v_lshlrev_b32 v5, 2, v0')
    for k in range(32): e(f'ds_read_b32 v{96+k}, v5 offset:{24832+256*k}')
    e('s_waitcnt lgkmcnt(0)')
    for k in range(1,32): e(f'v_add_f32 v96, v96, v{96+k}')
    e('v_cvt_pk_bf16_f32 v96, v96, v96'); e('v_lshlrev_b32 v96, 16, v96')
    e('v_lshlrev_b32 v5, 5, v3'); e('v_and_b32 v6, 7, v0'); e('v_lshl_add_u32 v5, v6, 2, v5')
    e('v_bfe_u32 v6, v0, 3, 1'); e('v_mul_u32_u24 v6, 144, v6'); e('v_add_u32 v5, v5, v6')
    e('ds_write_b32 v5, v96'); e('v_mov_b32 v97, 0'); e('ds_write_b32 v6, v97 offset:128'); e('s_waitcnt lgkmcnt(0)')
    w0_end(l0)
    lab('P3OUT')
    e('s_barrier')
    e('v_lshlrev_b32 v5, 2, v92')
    e('v_min_u32 v5, 8, v5')
    for i in range(11):
        for b in range(2): e(f'ds_read_b32 v{96+2*i+b}, v5 offset:{b*144+i*12}')
    for k in range(8): e(f'v_mov_b32 v{120+k}, 0')
    e('s_waitcnt vmcnt(0) lgkmcnt(0)')
    for i in range(11):
        for j in range(2):
            e(f'v_lshlrev_b32 v8, 16, v{16+2*i+j}'); e(f'v_and_b32 v9, 0xffff0000, v{16+2*i+j}')
            for b in range(2):
                e(f'v_fmac_f32 v{120+4*b+2*j}, v{96+2*i+b}, v8'); e(f'v_fmac_f32 v{121+4*b+2*j}, v{96+2*i+b}, v9')
    e('v_mul_u32_u24 v5, 4608, v92'); e('v_lshl_add_u32 v5, v93, 4, v5')
    e('ds_write_b128 v5, v[120:123] offset:1024'); e('ds_write_b128 v5, v[124:127] offset:3328')
    e('s_waitcnt lgkmcnt(0)'); e('s_barrier')
    e('v_cmp_gt_u32 vcc, 0x120, v0'); e('s_and_saveexec_b64 s[62:63], vcc'); l2=U('OSK'); e(f's_cbranch_execz {l2}')
    e('v_lshlrev_b32 v5, 4, v0')
    for g in range(3): e(f'ds_read_b128 v[{96+4*g}:{99+4*g}], v5 offset:{1024+4608*g}')
    e('s_waitcnt lgkmcnt(0)')
    for g in range(1,3):
        for k in range(4): e(f'v_add_f32 v{96+k}, v{96+k}, v{96+4*g+k}')
    e('s_mul_i32 s55, s2, 4608'); e(f's_add_u32 s55, s55, {OUTP}')
    e(f'buffer_store_dwordx4 v[96:99], v5, {S(SWS)}, s55 offen sc1')
    lab(l2); e('s_mov_b64 exec, s[62:63]')
    e('s_waitcnt vmcnt(0)'); e('s_barrier')
    l0=w0_begin()
    e('s_and_b32 s55, s2, 3'); e('s_lshl_b32 s55, s55, 2'); e('s_add_u32 s55, s55, 228'); signal('s55'); stamp(9)
    w0_end(l0)
    e('s_cmp_ge_u32 s2, 36'); e('s_cbranch_scc1 ENDS')
    l0=w0_begin()
    e('s_mov_b32 s55, 228'); wait('s55',4,64); stamp(10)
    w0_end(l0)
    e('s_barrier')
    e('s_cmp_ge_u32 s2, 18'); e('s_cselect_b32 s56, 1, 0')
    e('s_mul_i32 s57, s56, 18'); e('s_sub_u32 s57, s2, s57'); e('s_lshl_b32 s57, s57, 6')
    e('v_add_u32 v7, s57, v2')
    e('s_mul_i32 s55, s56, 589824'); e(f's_add_u32 s55, s55, {OUTP}')
    e('s_mov_b32 s58, 73728'); e('v_mul_lo_u32 v8, v1, s58'); e('v_lshl_add_u32 v8, v7, 2, v8')
    for k in range(16):
        e(f'buffer_load_dword v{96+k}, v8, {S(SWS)}, s55 offen sc1'); e('s_add_u32 s55, s55, 4608')
    e('s_waitcnt vmcnt(0)')
    for k in range(1,16): e(f'v_add_f32 v96, v96, v{96+k}')
    e('v_lshlrev_b32 v5, 2, v0'); e('ds_write_b32 v5, v96 offset:32768'); e('s_waitcnt lgkmcnt(0)'); e('s_barrier')
    e('s_cmp_lg_u32 s60, 0'); e('s_cbranch_scc1 END')
    for w in range(8): e(f'ds_read_b32 v{96+w}, v5 offset:{32768+256*w}')
    e('s_waitcnt lgkmcnt(0)')
    for w in range(1,8): e(f'v_add_f32 v96, v96, v{96+w}')
    e('v_cvt_pk_bf16_f32 v96, v96, v96')
    e('v_cmp_le_u32 vcc, 0x240, v7'); e('v_mov_b32 v6, 0x240'); e('s_nop 1'); e('v_cndmask_b32 v6, 0, v6, vcc')
    e('v_add_u32 v6, v6, v7'); e('s_mul_i32 s58, s56, 576'); e('v_add_u32 v6, s58, v6'); e('v_lshlrev_b32 v6, 1, v6')
    e(f'buffer_store_short v96, v6, {S(SOUT)}, 0 offen')

hdr=open(f'cdna_kernels/{NAME}.s.ref').read().split('\n')
hdr=[h for h in hdr if h.startswith(';') and '@launch' not in h and not h.startswith('; Override') and not h.startswith('; grid=ceil')]
L+=hdr
L+=['; @launch grid=(256,1,1) block=(512,1,1) lds=106496','.amdgcn_target "amdgcn-amd-amdhsa--gfx950"','.text']
body()
L+=['.section .rodata,"a"','.p2align 6',f'.amdhsa_kernel {NAME}_kernel','  .amdhsa_next_free_vgpr 256','  .amdhsa_next_free_sgpr 102','  .amdhsa_accum_offset 256',
    '  .amdhsa_group_segment_fixed_size 0','  .amdhsa_kernarg_size 112','  .amdhsa_user_sgpr_count 2','  .amdhsa_user_sgpr_kernarg_segment_ptr 1',
    '  .amdhsa_system_sgpr_workgroup_id_x 1','.end_amdhsa_kernel']
open(OUT,'w').write('\n'.join(L)+'\n')
```

```python
import struct, os
NAME='concat_heads__gqa_block_cached__compressed_kv_cla__decode'
OUT=os.environ.get('OUTF','') or f'cdna_kernels/{NAME}.s'
L=[]
def e(s): L.append('    '+s)
def lab(s): L.append(s+':')
def f32(x): return '0x%08x'%struct.unpack('<I',struct.pack('<f',x))[0]
CS=f32(1.4426950408889634/(128**0.5))
QA=0; QB=16384; QP=32768; PARTA=98304; STATB=368640; PARTB=393216; OUTP=4587520
WSSZ=8*1024*1024
DPP=' row_mask:0xf bank_mask:0xf'
HUGE='0x7fffff00'
SX,SW,SUK,SK,SV,SC,SWS,SDBG,SWO,SUV,SOUT=8,12,16,20,24,28,32,36,40,44,48
uid=[0]
STAMP=os.environ.get('STAMP','')=='1'
def stamp(i):
    if STAMP: e(f's_memrealtime s[{68+2*i}:{69+2*i}]')
def stamp_flush():
    if not STAMP: return
    l=U('SF'); e('s_cmp_lg_u32 s60, 0'); e(f's_cbranch_scc1 {l}')
    e('s_waitcnt lgkmcnt(0)'); e('s_mov_b64 exec, 1')
    e('s_lshl_b32 s55, s2, 7'); e('s_add_u32 s55, s55, 7340032'); e('v_mov_b32 v5, 0')
    for i in range(12):
        e(f'v_mov_b32 v6, s{68+2*i}'); e(f'buffer_store_dword v6, v5, {S(SWS)}, s55 offen offset:{4*i}')
    e('s_mov_b64 exec, -1')
    lab(l)

def U(p): uid[0]+=1; return f'{p}_{uid[0]}'
def srd(d, lo, size):
    e(f's_mov_b32 s{d}, s{lo}'); e(f's_and_b32 s{d+1}, s{lo+1}, 0xffff'); e(f's_mov_b32 s{d+2}, {size}'); e(f's_mov_b32 s{d+3}, 0x00020000')
def S(d): return f's[{d}:{d+3}]'
def rowred(op, regs):
    for ror in (8,4,2,1):
        e('s_nop 1')
        for r in regs: e(f'{op}_dpp v{r}, v{r}, v{r} row_ror:{ror}'+DPP)
def w0_begin():
    l=U('W0E'); e('s_cmp_lg_u32 s60, 0'); e(f's_cbranch_scc1 {l}'); return l
def w0_end(l): lab(l)
CB=0x780000
def signal(off_sgpr):
    e('s_mov_b64 s[62:63], exec'); e('s_mov_b64 exec, 1')
    e('v_mov_b32 v5, 1'); e(f'v_mov_b32 v6, {off_sgpr}'); e('v_lshlrev_b32 v6, 5, v6'); e(f'v_add_u32 v6, {CB}, v6')
    e(f'buffer_atomic_add v5, v6, {S(SWS)}, 0 offen')
    e('s_mov_b64 exec, s[62:63]')
def wait(off_sgpr, n, target, dbg=False):
    lp=U('POLL'); dn=U('PDONE')
    e('s_mov_b64 s[62:63], exec'); e(f's_mov_b64 exec, {(1<<n)-1}')
    if dbg: e('v_mov_b32 v6, 0')
    else:
        e('v_lshlrev_b32 v6, 2, v2'); e(f'v_add_u32 v6, {off_sgpr}, v6'); e('v_lshlrev_b32 v6, 5, v6'); e(f'v_add_u32 v6, {CB}, v6')
    e('s_mov_b32 s64, 0')
    lab(lp)
    e(f'buffer_load_dword v5, v6, {S(SDBG if dbg else SWS)}, 0 offen sc1')
    e('s_waitcnt vmcnt(0)')
    e(f'v_cmp_le_u32 vcc, {target}, v5')
    e('s_nop 3')
    e('s_cmp_eq_u64 vcc, exec'); e(f's_cbranch_scc1 {dn}')
    e('s_add_u32 s64, s64, 1'); e('s_cmp_gt_u32 s64, 0x20000'); e(f's_cbranch_scc1 {dn}')
    e('s_sleep 2'); e(f's_branch {lp}')
    lab(dn)
    e('s_mov_b64 exec, s[62:63]')
def init_counters():
    e(f's_add_u32 s100, s94, {CB}'); e('s_addc_u32 s101, s95, 0')
    l=U('INI'); e('s_cmp_lg_u32 s2, 0'); e(f's_cbranch_scc1 {l}'); e('s_cmp_lg_u32 s60, 0'); e(f's_cbranch_scc1 {l}')
    e('v_lshlrev_b32 v5, 7, v2'); e(f'v_add_u32 v5, {CB}, v5'); e('v_mov_b32 v6, 0')
    e(f'buffer_store_dword v6, v5, {S(SWS)}, 0 offen sc1'); e('s_waitcnt vmcnt(0)')
    e('s_mov_b64 exec, 1'); e('v_mov_b32 v5, 1'); e('v_mov_b32 v6, 0')
    e(f'buffer_atomic_add v5, v6, {S(SDBG)}, 0 offen'); e('s_mov_b64 exec, -1')
    lab(l)
def wait_init():
    wait('0',1,1,dbg=True)

def body():
    L.append(f'.globl {NAME}_kernel'); L.append('.p2align 8'); L.append(f'.type {NAME}_kernel,@function'); lab(f'{NAME}_kernel')
    e('s_cmp_ge_u32 s2, 256'); e('s_cbranch_scc1 END')
    e('s_load_dwordx16 s[68:83], s[0:1], 0'); e('s_load_dwordx8 s[84:91], s[0:1], 64'); e('s_load_dwordx4 s[92:95], s[0:1], 96')
    e('v_lshrrev_b32 v1, 6, v0'); e('v_and_b32 v2, 63, v0'); e('v_lshrrev_b32 v3, 4, v2'); e('v_and_b32 v4, 15, v2')
    for r in (12,13,14,15): e(f'v_mov_b32 v{r}, {HUGE}')
    e('v_readfirstlane_b32 s60, v1')
    e(f's_mov_b32 s61, {CS}')
    e('s_waitcnt lgkmcnt(0)')
    e('s_cmp_lt_u32 s2, 128')
    e('s_cselect_b64 s[4:5], s[68:69], s[78:79]'); e('s_cselect_b64 s[6:7], s[74:75], s[82:83]'); e('s_cselect_b64 s[52:53], s[76:77], s[88:89]')
    srd(SX,4,2304); srd(SW,6,576*8192); srd(SUK,84,512*8192); srd(SK,70,2*16*4096*256); srd(SV,72,2*16*4096*256)
    srd(SC,80,2*4096*1024); srd(SWS,94,WSSZ); srd(SDBG,92,256); srd(SWO,52,4096*1152); srd(SUV,86,512*8192); srd(SOUT,90,4608)
    init_counters()
    stamp(0)
    e('s_and_b32 s3, s2, 127'); e('s_lshl_b32 s54, s3, 6')
    e('v_lshrrev_b32 v7, 2, v0'); e('v_and_b32 v8, 3, v0')
    e('s_cmp_ge_u32 s2, 128'); e('s_cbranch_scc1 P1L_SKIP')
    e('v_lshlrev_b32 v9, 13, v7'); e('v_lshl_add_u32 v9, v8, 4, v9'); e('v_add_u32 v9, s54, v9')
    e('v_lshlrev_b32 v10, 1, v7')
    e('s_mov_b32 s55, 0')
    for i in range(5):
        e(f'buffer_load_dwordx4 v[{16+4*i}:{19+4*i}], v9, {S(SW)}, s55 offen nt'); e('s_add_u32 s55, s55, 1048576')
    for i in range(5):
        for b in range(2): e(f'buffer_load_ushort v{36+2*i+b}, v10, {S(SX)}, 0 offen offset:{b*1152+i*256}')
    lab('P1L_SKIP')
    e('s_cmp_ge_u32 s2, 192'); e('s_cbranch_scc1 ROLE_B')
    e('s_mul_hi_u32 s96, s2, 715827883'); e('s_mul_i32 s97, s96, 6'); e('s_sub_u32 s97, s2, s97')
    e('s_lshl_b32 s55, s96, 20'); e('s_mul_i32 s58, s97, 172032'); e('s_add_u32 s55, s55, s58')
    e('s_sub_u32 s58, s60, 1'); e('s_mul_i32 s58, s58, 24576'); e('s_add_u32 s55, s55, s58'); e('s_mov_b32 s98, 6')
    e('s_cmp_lg_u32 s60, 0'); e('s_cbranch_scc1 AROLE_OK')
    e('s_lshl_b32 s55, s96, 20'); e('s_add_u32 s55, s55, 1032192')
    e('s_cmp_eq_u32 s97, 0'); e('s_cselect_b32 s98, 4, 0')
    lab('AROLE_OK')
    e('v_lshlrev_b32 v13, 8, v4'); e('v_lshl_add_u32 v13, v3, 4, v13'); e('v_add_u32 v13, s55, v13')
    e('v_lshlrev_b32 v12, 4, v2'); e('v_add_u32 v12, s55, v12')
    e('s_branch PF_DONE')
    lab('ROLE_B')
    e('s_sub_u32 s96, s2, 192')
    e('s_lshl_b32 s55, s96, 17')
    e('s_sub_u32 s58, s60, 1'); e('s_max_i32 s58, s58, 0'); e('s_mul_i32 s58, s58, 9216'); e('s_add_u32 s55, s55, s58')
    e('v_lshlrev_b32 v12, 4, v2'); e('v_add_u32 v12, s55, v12')
    lab('PF_DONE')
    e('s_cmp_ge_u32 s2, 128'); e('s_cbranch_scc1 P1_DONE')
    for k in range(16): e(f'v_mov_b32 v{46+k}, 0')
    e('s_waitcnt vmcnt(0)')
    lab('P1GO'); stamp(1)
    for i in range(10): e(f'v_lshlrev_b32 v{36+i}, 16, v{36+i}')
    for i in range(5):
        for j in range(4):
            e(f'v_lshlrev_b32 v62, 16, v{16+4*i+j}'); e(f'v_and_b32 v63, 0xffff0000, v{16+4*i+j}')
            for b in range(2):
                e(f'v_fmac_f32 v{46+b*8+2*j}, v{36+2*i+b}, v62'); e(f'v_fmac_f32 v{46+b*8+2*j+1}, v{36+2*i+b}, v63')
    for ror in (4,8):
        e('s_nop 1')
        for k in range(16): e(f'v_add_f32_dpp v{46+k}, v{46+k}, v{46+k} row_ror:{ror}'+DPP)
    e('v_lshrrev_b32 v5, 4, v0'); e('v_lshlrev_b32 v5, 8, v5'); e('v_lshl_add_u32 v5, v8, 6, v5')
    e('v_cmp_gt_u32 vcc, 4, v4'); e('s_and_saveexec_b64 s[62:63], vcc')
    for k in range(4): e(f'ds_write_b128 v5, v[{46+4*k}:{49+4*k}] offset:{16*k}')
    e('s_mov_b64 exec, s[62:63]')
    e('s_waitcnt lgkmcnt(0)'); e('s_barrier')
    l0=w0_begin()
    e('v_lshlrev_b32 v5, 2, v0')
    for k in range(32): e(f'ds_read_b32 v{16+k}, v5 offset:{256*k}')
    e('s_waitcnt lgkmcnt(0)')
    for k in range(1,32): e(f'v_add_f32 v16, v16, v{16+k}')
    e('v_cvt_pk_bf16_f32 v16, v16, v16')
    e('v_lshlrev_b32 v5, 4, v3'); e('v_and_b32 v6, 7, v0'); e('v_lshl_add_u32 v5, v6, 1, v5')
    e('v_bfe_u32 v6, v0, 3, 1'); e('v_lshl_add_u32 v5, v6, 13, v5')
    e('s_lshr_b32 s55, s2, 7'); e('s_lshl_b32 s55, s55, 14'); e('s_add_u32 s55, s55, s54')
    e(f'buffer_store_short v16, v5, {S(SWS)}, s55 offen sc1')
    e('s_waitcnt vmcnt(0)')
    e('s_lshr_b32 s55, s2, 3'); e('s_lshl_b32 s55, s55, 2')
    e('s_sub_u32 s58, s2, 128'); e('s_lshr_b32 s58, s58, 2'); e('s_lshl_b32 s58, s58, 2'); e('s_add_u32 s58, s58, 64')
    e('s_cmp_lt_u32 s2, 128'); e('s_cselect_b32 s55, s55, s58')
    e('s_mov_b32 s59, s55'); wait_init(); e('s_mov_b32 s55, s59')
    signal('s55'); stamp(2)
    w0_end(l0)
    lab('P1_DONE')
    e('s_cmp_ge_u32 s2, 192'); e('s_cbranch_scc1 ATT_B')
    attA()
    e('s_branch P3')
    lab('ATT_B')
    attB()
    lab('P3')
    p3()
    stamp(11)
    lab('ENDS'); stamp_flush()
    lab('END'); e('s_endpgm')

OOB='0x7fff0000'
def kissue():
    for t in range(6):
        e(f's_cmp_gt_u32 s98, {t}'); e(f's_mov_b32 s55, {t*4096}'); e(f's_cselect_b32 s55, s55, {OOB}')
        for ks in range(4):
            r=64+16*t+4*ks
            e(f'buffer_load_dwordx4 v[{r}:{r+3}], v13, {S(SK)}, s55 offen offset:{ks*64} nt')
def vissue():
    for i in range(24):
        if i%4==0:
            e(f's_cmp_gt_u32 s98, {i//4}'); e(f's_mov_b32 s55, {(i//4)*4096}'); e(f's_cselect_b32 s55, s55, {OOB}')
        e(f'buffer_load_dwordx4 v[{160+4*i}:{163+4*i}], v12, {S(SV)}, s55 offen offset:{(i%4)*1024} nt')
def cissue():
    for p in range(2):
        for i in range(10):
            if i%4==0 or i==9: e(f's_mov_b32 s55, {p*65536+(i//4)*4096}')
            if i==9: e('s_cmp_eq_u32 s60, 7'); e(f's_cselect_b32 s55, s55, {OOB}')
            r=64+40*p+4*i
            e(f'buffer_load_dwordx4 v[{r}:{r+3}], v12, {S(SC)}, s55 offen offset:{(i%4)*1024} nt')

def late_loads():
    e('s_mov_b32 s55, 29826162'); e('v_mul_hi_u32 v92, v0, s55')
    e('v_mul_u32_u24 v93, 144, v92'); e('v_sub_u32 v93, v0, v93')
    e('v_mul_u32_u24 v5, 1152, v92'); e('v_lshl_add_u32 v5, v93, 3, v5')
    e('v_cmp_gt_u32 vcc, 0x1b0, v0'); e(f'v_mov_b32 v6, {HUGE}'); e('s_nop 1'); e('v_cndmask_b32 v5, v6, v5, vcc')
    e('s_mul_i32 s55, s3, 36864')
    for i in range(11):
        e(f'buffer_load_dwordx2 v[{16+2*i}:{17+2*i}], v5, {S(SWO)}, s55 offen nt'); e('s_add_u32 s55, s55, 3456')
    e('v_lshrrev_b32 v5, 2, v0'); e('v_lshlrev_b32 v5, 13, v5'); e('v_and_b32 v6, 3, v0'); e('v_lshl_add_u32 v5, v6, 4, v5')
    e('s_cmp_lt_u32 s2, 128'); e(f's_cselect_b32 s55, {HUGE}, 0'); e('v_add_u32 v5, s55, v5')
    e('s_lshl_b32 s55, s3, 6')
    for i in range(4):
        e(f'buffer_load_dwordx4 v[{40+4*i}:{43+4*i}], v5, {S(SUV)}, s55 offen nt'); e('s_add_u32 s55, s55, 1048576')

def attA():
    e('s_cmp_eq_u32 s60, 0'); e('s_cbranch_scc1 AK_SKIP')
    kissue(); vissue()
    lab('AK_SKIP')
    l0=w0_begin()
    wait_init()
    e('s_and_b32 s55, s96, 15'); e('s_lshl_b32 s55, s55, 2')
    wait('s55',1,8); stamp(5)
    kissue(); vissue()
    w0_end(l0); e('s_barrier')
    e('v_lshlrev_b32 v5, 8, v4'); e('v_lshl_add_u32 v5, v3, 4, v5'); e('s_lshl_b32 s55, s96, 9')
    e('v_cmp_gt_u32 vcc, 2, v4'); e(f'v_mov_b32 v6, {HUGE}'); e('s_nop 1'); e('v_cndmask_b32 v5, v6, v5, vcc')
    for ks in range(4): e(f'buffer_load_dwordx4 v[{16+4*ks}:{19+4*ks}], v5, {S(SWS)}, s55 offen offset:{ks*64} sc1')
    e('s_waitcnt vmcnt(0)')
    for t in range(6):
        for ks in range(4):
            r=64+16*t+4*ks
            c='0' if ks==0 else f'v[{32+4*t}:{35+4*t}]'
            e(f'v_mfma_f32_16x16x32_bf16 v[{32+4*t}:{35+4*t}], v[{16+4*ks}:{19+4*ks}], v[{r}:{r+3}], {c}')
    e('s_nop 7'); e('s_nop 3'); stamp(6)
    for t in range(6):
        e(f's_cmp_gt_u32 s98, {t}'); e('s_cselect_b32 s55, 0, 0xff800000')
        for h in range(2): e(f'v_add_f32 v{32+4*t+h}, s55, v{32+4*t+h}')
    for h in range(2):
        e(f'v_max3_f32 v{8+h}, v{32+h}, v{36+h}, v{40+h}'); e(f'v_max3_f32 v{8+h}, v{8+h}, v{44+h}, v{48+h}'); e(f'v_max_f32 v{8+h}, v{8+h}, v{52+h}')
        e(f'v_max_f32 v{8+h}, 0xf149f2ca, v{8+h}')
    rowred('v_max_f32',[8,9])
    e('s_nop 1')
    for h in range(2):
        for t in range(6):
            e(f'v_sub_f32 v{32+4*t+h}, v{32+4*t+h}, v{8+h}'); e(f'v_mul_f32 v{32+4*t+h}, s61, v{32+4*t+h}')
    for h in range(2):
        for t in range(6): e(f'v_exp_f32 v{32+4*t+h}, v{32+4*t+h}')
    e('s_nop 0')
    for h in range(2):
        e(f'v_add_f32 v{10+h}, v{32+h}, v{36+h}'); e(f'v_add_f32 v7, v{40+h}, v{44+h}'); e(f'v_add_f32 v{10+h}, v{10+h}, v7'); e(f'v_add_f32 v7, v{48+h}, v{52+h}'); e(f'v_add_f32 v{10+h}, v{10+h}, v7')
    rowred('v_add_f32',[10,11])
    e('v_mul_u32_u24 v5, 768, v1'); e('v_lshl_add_u32 v5, v2, 3, v5')
    e('v_cmp_gt_u32 vcc, 16, v2'); e('s_and_saveexec_b64 s[62:63], vcc')
    for t in range(6): e(f'ds_write_b64 v5, v[{32+4*t}:{33+4*t}] offset:{10240+t*128}')
    e('v_lshlrev_b32 v6, 4, v1'); e('ds_write_b128 v6, v[8:11] offset:16384')
    e('s_mov_b64 exec, s[62:63]')
    for k in range(16): e(f'v_mov_b32 v{56+k}, 0')
    e('s_waitcnt lgkmcnt(0)')
    e('v_mul_u32_u24 v5, 768, v1'); e('v_lshl_add_u32 v5, v3, 3, v5')
    for half in range(2):
        for ii in range(12): e(f'ds_read_b64 v[{96+2*ii}:{97+2*ii}], v5 offset:{10240+(half*12+ii)*32}')
        for ii in range(12):
            i=half*12+ii; pr=96+2*ii; vr=160+4*i
            e(f's_waitcnt lgkmcnt({11-ii})')
            for j in range(4):
                e(f'v_lshlrev_b32 v6, 16, v{vr+j}'); e(f'v_and_b32 v7, 0xffff0000, v{vr+j}')
                e(f'v_pk_fma_f32 v[{56+2*j}:{57+2*j}], v[6:7], v[{pr}:{pr+1}], v[{56+2*j}:{57+2*j}] op_sel:[0,0,0] op_sel_hi:[1,0,1]')
                e(f'v_pk_fma_f32 v[{64+2*j}:{65+2*j}], v[6:7], v[{pr}:{pr+1}], v[{64+2*j}:{65+2*j}] op_sel:[0,1,0] op_sel_hi:[1,1,1]')
    late_loads()
    e('v_lshl_add_u32 v5, v1, 2, v3'); e('v_lshlrev_b32 v5, 10, v5'); e('v_lshl_add_u32 v5, v4, 5, v5')
    for h in range(2):
        e(f'ds_write_b128 v5, v[{56+8*h}:{59+8*h}] offset:{17408+512*h}'); e(f'ds_write_b128 v5, v[{60+8*h}:{63+8*h}] offset:{17408+512*h+16}')
    e('s_waitcnt lgkmcnt(0)'); e('s_barrier')
    lsk=U('ASK')
    e('s_cmp_ge_u32 s60, 4'); e(f's_cbranch_scc1 {lsk}')
    e('v_lshrrev_b32 v5, 7, v0'); e('v_and_b32 v6, 127, v0'); e('v_lshlrev_b32 v7, 2, v5')
    for w in range(8):
        e(f'ds_read_b32 v{96+w}, v7 offset:{16384+16*w}'); e(f'ds_read_b32 v{104+w}, v7 offset:{16384+16*w+8}')
    e('v_lshlrev_b32 v8, 9, v5'); e('v_lshl_add_u32 v8, v6, 2, v8')
    for wg in range(32): e(f'ds_read_b32 v{112+wg}, v8 offset:{17408+1024*wg}')
    e('s_waitcnt lgkmcnt(0)')
    e('v_max_f32 v9, v96, v97')
    for w in range(2,8): e(f'v_max_f32 v9, v9, v{96+w}')
    for w in range(8):
        e(f'v_sub_f32 v{96+w}, v{96+w}, v9'); e(f'v_mul_f32 v{96+w}, s61, v{96+w}'); e(f'v_exp_f32 v{96+w}, v{96+w}')
    e('v_mov_b32 v10, 0'); e('v_mov_b32 v11, 0')
    for w in range(8):
        e(f'v_add_f32 v12, v{112+4*w}, v{113+4*w}'); e(f'v_add_f32 v13, v{114+4*w}, v{115+4*w}'); e('v_add_f32 v12, v12, v13')
        e(f'v_fmac_f32 v10, v{96+w}, v12'); e(f'v_fmac_f32 v11, v{96+w}, v{104+w}')
    e('v_mul_f32 v9, s61, v9')
    e('s_mul_i32 s55, s96, 12'); e('s_add_u32 s55, s55, s97'); e('s_mul_i32 s55, s55, 528'); e(f's_add_u32 s55, s55, {PARTA}')
    e('v_mul_u32_u24 v12, 3168, v5'); e('v_lshl_add_u32 v12, v6, 2, v12')
    e(f'buffer_store_dword v10, v12, {S(SWS)}, s55 offen sc1')
    e('v_cmp_eq_u32 vcc, 0, v6'); e('s_and_saveexec_b64 s[62:63], vcc'); l2=U('ASK2'); e(f's_cbranch_execz {l2}')
    e('v_mov_b32 v10, v9')
    e(f'buffer_store_dwordx2 v[10:11], v12, {S(SWS)}, s55 offen offset:512 sc1')
    lab(l2); e('s_mov_b64 exec, s[62:63]')
    lab(lsk)
    e('s_waitcnt vmcnt(0)'); e('s_barrier')
    l0=w0_begin()
    e('s_and_b32 s55, s96, 15'); e('s_lshl_b32 s55, s55, 2'); signal('s55'); stamp(7)
    w0_end(l0)

PBUF=0; SMAX=4608; LSUM=5120; QL=5632; CT=38912
def bprep():
    e('s_lshr_b32 s56, s96, 1'); e('s_and_b32 s57, s96, 1')
    e('v_lshrrev_b32 v7, 4, v0')
    e('v_lshlrev_b32 v9, 13, v7'); e('v_lshl_add_u32 v9, v4, 4, v9')
    e('s_lshl_b32 s55, s56, 8')
    for i in range(18):
        e(f'buffer_load_dwordx4 v[{64+4*i}:{67+4*i}], v9, {S(SW)}, s55 offen nt'); e('s_add_u32 s55, s55, 262144')
    e('v_lshlrev_b32 v10, 1, v7')
    for i in range(18):
        for b in range(2): e(f'buffer_load_ushort v{136+2*i+b}, v10, {S(SX)}, 0 offen offset:{b*1152+i*64}')
    e('s_lshl_b32 s55, s57, 21'); e('s_lshl_b32 s58, s56, 8'); e('s_add_u32 s55, s55, s58')
    for i in range(8):
        e(f'buffer_load_dwordx4 v[{172+4*i}:{175+4*i}], v9, {S(SUK)}, s55 offen nt'); e('s_add_u32 s55, s55, 262144')
    for k in range(16): e(f'v_mov_b32 v{16+k}, 0')
    e('s_waitcnt vmcnt(8)')
    for i in range(36): e(f'v_lshlrev_b32 v{136+i}, 16, v{136+i}')
    for i in range(18):
        for j in range(4):
            e(f'v_lshlrev_b32 v32, 16, v{64+4*i+j}'); e(f'v_and_b32 v33, 0xffff0000, v{64+4*i+j}')
            for b in range(2):
                e(f'v_fmac_f32 v{16+b*8+2*j}, v{136+2*i+b}, v32'); e(f'v_fmac_f32 v{16+b*8+2*j+1}, v{136+2*i+b}, v33')
    e('v_lshlrev_b32 v5, 10, v7'); e('v_lshl_add_u32 v5, v4, 5, v5')
    for b in range(2):
        e(f'ds_write_b128 v5, v[{16+8*b}:{19+8*b}] offset:{b*512}'); e(f'ds_write_b128 v5, v[{20+8*b}:{23+8*b}] offset:{b*512+16}')
    e('s_waitcnt lgkmcnt(0)'); e('s_barrier')
    lk=U('BPK'); e('s_cmp_ge_u32 s60, 4'); e(f's_cbranch_scc1 {lk}')
    e('v_lshlrev_b32 v5, 2, v0')
    for k in range(32): e(f'ds_read_b32 v{64+k}, v5 offset:{1024*k}')
    e('s_waitcnt lgkmcnt(0)')
    for k in range(1,32): e(f'v_add_f32 v64, v64, v{64+k}')
    e('v_cvt_pk_bf16_f32 v64, v64, v64'); e('v_lshlrev_b32 v5, 1, v0'); e('ds_write_b16 v5, v64 offset:32768'); e('s_waitcnt lgkmcnt(0)')
    lab(lk); e('s_barrier')
    e('v_lshlrev_b32 v5, 4, v4')
    e('ds_read_b128 v[32:35], v5 offset:32768'); e('ds_read_b128 v[36:39], v5 offset:33024')
    for k in range(16): e(f'v_mov_b32 v{16+k}, 0')
    e('s_waitcnt vmcnt(0) lgkmcnt(0)')
    for k in range(4):
        for i in range(8):
            for b in range(2): e(f'v_dot2_f32_bf16 v{16+2*i+b}, v{172+4*i+k}, v{32+4*b+k}, v{16+2*i+b}')
    e('s_nop 3')
    rowred('v_add_f32',list(range(16,32)))
    e('s_nop 1')
    for i in range(1,8):
        e(f'v_cmp_eq_u32 vcc, {i}, v4'); e('s_nop 1')
        for b in range(2): e(f'v_cndmask_b32 v{16+b}, v{16+b}, v{16+2*i+b}, vcc')
    e('v_cvt_pk_bf16_f32 v16, v16, v16'); e('v_cvt_pk_bf16_f32 v17, v17, v17')
    e('s_lshl_b32 s55, s56, 10'); e('s_lshl_b32 s58, s57, 9'); e('s_add_u32 s55, s55, s58'); e(f's_add_u32 s55, s55, {QP}'); e('s_add_u32 s58, s55, 32768')
    e('v_lshl_add_u32 v5, v4, 5, v7'); e('v_lshlrev_b32 v5, 1, v5')
    e('v_cmp_gt_u32 vcc, 8, v4'); e('s_and_saveexec_b64 s[62:63], vcc')
    e(f'buffer_store_short v16, v5, {S(SWS)}, s55 offen sc1'); e(f'buffer_store_short v17, v5, {S(SWS)}, s58 offen sc1')
    e('s_mov_b64 exec, s[62:63]')
    e('s_waitcnt vmcnt(0)'); e('s_barrier')
    l0=w0_begin()
    wait_init()
    e('s_and_b32 s55, s2, 7'); e('s_lshl_b32 s55, s55, 2'); e('s_add_u32 s55, s55, 192')
    signal('s55'); stamp(4)
    w0_end(l0)

def attB():
    bprep()
    e('s_cmp_eq_u32 s60, 0'); e('s_cbranch_scc1 BC_SKIP')
    cissue()
    lab('BC_SKIP')
    l0=w0_begin()
    e('s_mov_b32 s55, 192'); wait('s55',8,8); stamp(5)
    e('s_lshr_b32 s55, s96, 5'); e('s_lshl_b32 s55, s55, 15'); e(f's_add_u32 s55, s55, {QP}')
    e('v_lshlrev_b32 v5, 4, v2')
    for h in range(32):
        e(f'buffer_load_dwordx4 v[{64+4*h}:{67+4*h}], v5, {S(SWS)}, s55 offen offset:{(h%4)*1024} sc1')
        if h%4==3: e('s_add_u32 s55, s55, 4096')
    e(f'v_add_u32 v6, {QL}, v5')
    for h in range(32):
        e(f's_waitcnt vmcnt({31-h})'); e(f'ds_write_b128 v6, v[{64+4*h}:{67+4*h}] offset:{h*1040}')
    w0_end(l0)
    e('v_subrev_u32 v6, 1, v1'); e('v_max_i32 v6, 0, v6'); e('v_mul_u32_u24 v6, 9360, v6'); e('v_lshl_add_u32 v6, v2, 4, v6'); e(f'v_add_u32 v6, {CT}, v6')
    e('v_and_b32 v7, 1, v1'); e('v_lshrrev_b32 v8, 1, v1')
    e('v_lshl_add_u32 v9, v7, 4, v4'); e('v_mul_u32_u24 v9, 1040, v9'); e('v_lshl_add_u32 v9, v3, 4, v9'); e(f'v_add_u32 v9, {QL}, v9')
    e('v_lshl_add_u32 v10, v8, 4, v4'); e('v_mul_u32_u24 v10, 1040, v10'); e('v_lshl_add_u32 v10, v3, 4, v10'); e(f'v_add_u32 v10, {CT}, v10')
    e('v_lshlrev_b32 v11, 7, v8'); e('v_lshl_add_u32 v11, v7, 6, v11'); e('v_lshl_add_u32 v11, v3, 4, v11')
    e('v_lshlrev_b32 v16, 4, v3')
    e('v_lshl_add_u32 v17, v7, 2, v3'); e('v_mul_u32_u24 v17, 576, v17'); e('v_lshl_add_u32 v18, v8, 4, v4'); e('v_lshl_add_u32 v17, v18, 1, v17')
    e('v_mul_u32_u24 v18, 144, v4'); e('v_lshl_add_u32 v18, v3, 4, v18')
    e('v_lshrrev_b32 v19, 2, v4'); e('v_lshl_add_u32 v19, v3, 3, v19'); e('v_mul_u32_u24 v19, 1040, v19')
    e('v_and_b32 v20, 3, v4'); e('v_lshl_add_u32 v19, v20, 3, v19'); e('v_lshl_add_u32 v19, v1, 7, v19'); e(f'v_add_u32 v19, {CT}, v19')
    for k in range(8): e(f'v_mov_b32 v{20+k}, 0xff800000')
    for k in range(4): e(f'v_mov_b32 v{28+k}, 0')
    for k in range(32): e(f'v_mov_b32 v{224+k}, 0')
    for p in range(2):
        e(f's_waitcnt vmcnt({10-10*p})')
        e('s_barrier')
        lw=U('CW'); e('s_cmp_eq_u32 s60, 0'); e(f's_cbranch_scc1 {lw}')
        for i in range(9): e(f'ds_write_b128 v6, v[{64+40*p+4*i}:{67+40*p+4*i}] offset:{i*1040}')
        e('s_cmp_lg_u32 s60, 7'); e(f's_cbranch_scc1 {lw}')
        e(f'ds_write_b128 v6, v[{64+40*p+36}:{67+40*p+36}] offset:{9*1040}')
        lab(lw)
        e('s_waitcnt lgkmcnt(0)'); e('s_barrier')
        if p==0: stamp(6)
        if p==1: stamp(10)
        for half in range(4):
            for k in range(4):
                ks=half*4+k
                e(f'ds_read_b128 v[{32+8*k}:{35+8*k}], v9 offset:{ks*64}'); e(f'ds_read_b128 v[{36+8*k}:{39+8*k}], v10 offset:{ks*64}')
            for k in range(4):
                ks=half*4+k
                e(f's_waitcnt lgkmcnt({6-2*k})')
                c='0' if ks==0 else 'v[12:15]'
                e(f'v_mfma_f32_16x16x32_bf16 v[12:15], v[{32+8*k}:{35+8*k}], v[{36+8*k}:{39+8*k}], {c}')
            e('s_nop 3')
        e('s_nop 7'); e('s_nop 3')
        for r in range(4): e(f'v_mov_b32 v{32+r}, v{12+r}')
        rowred('v_max_f32',[32,33,34,35])
        e('s_nop 1')
        e(f'ds_write_b128 v11, v[32:35] offset:{SMAX}')
        e('s_waitcnt lgkmcnt(0)'); e('s_barrier')
        for mt in range(2):
            for nt in range(4): e(f'ds_read_b128 v[{32+16*mt+4*nt}:{35+16*mt+4*nt}], v16 offset:{SMAX+nt*128+mt*64}')
        e('s_waitcnt lgkmcnt(0)')
        for mt in range(2):
            for r in range(4):
                b0=32+16*mt+r
                e(f'v_max_f32 v{b0}, v{b0}, v{b0+4}'); e(f'v_max3_f32 v{b0}, v{b0}, v{b0+8}, v{b0+12}')
                e(f'v_max_f32 v{b0}, v{b0}, v{20+4*mt+r}')
                e(f'v_sub_f32 v{b0+4}, v{20+4*mt+r}, v{b0}'); e(f'v_mul_f32 v{b0+4}, s61, v{b0+4}'); e(f'v_exp_f32 v{b0+4}, v{b0+4}')
                e(f'v_mov_b32 v{20+4*mt+r}, v{b0}')
        e('v_cmp_eq_u32 vcc, 1, v7'); e('s_nop 1')
        for r in range(4):
            e(f'v_cndmask_b32 v{40+r}, v{20+r}, v{24+r}, vcc'); e(f'v_cndmask_b32 v{44+r}, v{36+r}, v{52+r}, vcc')
        for r in range(4):
            e(f'v_sub_f32 v{12+r}, v{12+r}, v{40+r}'); e(f'v_mul_f32 v{12+r}, s61, v{12+r}'); e(f'v_exp_f32 v{12+r}, v{12+r}')
        e('s_nop 0')
        for r in range(4):
            e(f'v_fma_f32 v{28+r}, v{28+r}, v{44+r}, v{12+r}'); e(f'v_cvt_pk_bf16_f32 v{40+r}, v{12+r}, v{12+r}')
        for r in range(4): e(f'ds_write_b16 v17, v{40+r} offset:{PBUF+144*r}')
        for mt in range(2):
            for n in range(4):
                for r in range(4): e(f'v_mul_f32 v{224+(mt*4+n)*4+r}, v{36+16*mt+r}, v{224+(mt*4+n)*4+r}')
        e('s_waitcnt lgkmcnt(0)'); e('s_barrier')
        for mt in range(2):
            for ks in range(2): e(f'ds_read_b128 v[{32+(mt*2+ks)*4}:{35+(mt*2+ks)*4}], v18 offset:{PBUF+mt*2304+ks*64}')
        for grp in range(2):
            for nn in range(2):
                n=grp*2+nn
                for ks in range(2):
                    r=48+nn*8+ks*4
                    e(f'ds_read_b64_tr_b16 v[{r}:{r+1}], v19 offset:{ks*32*1040+n*32}')
                    e(f'ds_read_b64_tr_b16 v[{r+2}:{r+3}], v19 offset:{ks*32*1040+4*1040+n*32}')
            for nn in range(2):
                n=grp*2+nn
                e(f's_waitcnt lgkmcnt({4-4*nn})')
                for ks in range(2):
                    for mt in range(2):
                        a_=224+(mt*4+n)*4
                        e(f'v_mfma_f32_16x16x32_bf16 v[{a_}:{a_+3}], v[{32+(mt*2+ks)*4}:{35+(mt*2+ks)*4}], v[{48+nn*8+ks*4}:{51+nn*8+ks*4}], v[{a_}:{a_+3}]')
            e('s_nop 3')
        e('s_nop 7'); e('s_nop 3')
    stamp(11)
    rowred('v_add_f32',[28,29,30,31])
    e('s_nop 1')
    e(f'ds_write_b128 v11, v[28:31] offset:{LSUM}')
    e('s_lshr_b32 s55, s96, 5'); e('s_lshl_b32 s55, s55, 20'); e('s_and_b32 s58, s96, 31'); e('s_lshl_b32 s58, s58, 10'); e('s_add_u32 s55, s55, s58'); e(f's_add_u32 s55, s55, {PARTB}')
    e('s_barrier')
    e('v_mul_u32_u24 v32, 8256, v3'); e('v_lshl_add_u32 v32, v1, 8, v32'); e('v_lshl_add_u32 v32, v4, 2, v32'); e(f'v_add_u32 v32, {CT}, v32')
    for mt in range(2):
        for r in range(4):
            for n in range(4): e(f'ds_write_b32 v32, v{224+(mt*4+n)*4+r} offset:{(mt*16+r)*2064+n*64}')
    e('s_waitcnt lgkmcnt(0)'); e('s_barrier')
    e('v_mul_u32_u24 v35, 2064, v1'); e('v_lshl_add_u32 v35, v2, 5, v35'); e(f'v_add_u32 v35, {CT}, v35')
    e('v_lshlrev_b32 v36, 15, v1'); e('v_lshl_add_u32 v36, v2, 4, v36')
    for k in range(4):
        e(f'ds_read_b128 v[{64+8*k}:{67+8*k}], v35 offset:{k*8*2064}'); e(f'ds_read_b128 v[{68+8*k}:{71+8*k}], v35 offset:{k*8*2064+16}')
    for k in range(4):
        e(f's_waitcnt lgkmcnt({6-2*k})')
        for q in range(4): e(f'v_cvt_pk_bf16_f32 v{96+4*k+q}, v{64+8*k+2*q}, v{65+8*k+2*q}')
        e(f's_add_u32 s58, s55, {k*8*32768}')
        e(f'buffer_store_dwordx4 v[{96+4*k}:{99+4*k}], v36, {S(SWS)}, s58 offen sc1')
    lsk=U('BSK')
    e('s_cmp_ge_u32 s60, 2'); e(f's_cbranch_scc1 {lsk}')
    e('v_lshlrev_b32 v33, 6, v7'); e('v_lshl_add_u32 v33, v3, 4, v33')
    for nt in range(4): e(f'ds_read_b128 v[{40+4*nt}:{43+4*nt}], v33 offset:{LSUM+nt*128}')
    e('s_waitcnt lgkmcnt(0)')
    e('s_lshr_b32 s55, s96, 5'); e('s_lshl_b32 s55, s55, 13'); e('s_and_b32 s58, s96, 31'); e('s_lshl_b32 s58, s58, 3'); e('s_add_u32 s55, s55, s58'); e(f's_add_u32 s55, s55, {STATB}')
    e('v_lshl_add_u32 v34, v7, 2, v3'); e('v_lshlrev_b32 v34, 10, v34')
    e('v_cmp_eq_u32 s[66:67], 0, v4')
    for r in range(4):
        e('v_cmp_eq_u32 vcc, 1, v7'); e('s_nop 1')
        e(f'v_cndmask_b32 v36, v{20+r}, v{24+r}, vcc'); e('v_mul_f32 v36, s61, v36')
        e(f'v_add_f32 v37, v{40+r}, v{44+r}'); e(f'v_add_f32 v38, v{48+r}, v{52+r}'); e('v_add_f32 v37, v37, v38')
        e('s_mov_b64 s[62:63], exec'); e('s_and_b64 exec, exec, s[66:67]')
        e(f'buffer_store_dwordx2 v[36:37], v34, {S(SWS)}, s55 offen offset:{r*256} sc1')
        e('s_nop 1'); e('s_mov_b64 exec, s[62:63]')
    lab(lsk)
    e('s_waitcnt vmcnt(0)'); e('s_barrier')
    l0=w0_begin()
    e('s_mov_b32 s55, 224'); signal('s55'); stamp(7)
    w0_end(l0)
    late_loads()

def p3():
    e('s_lshr_b32 s56, s3, 2'); e('s_and_b32 s57, s3, 3')
    e('s_cmp_ge_u32 s2, 128'); e('s_cbranch_scc1 P3B')
    l0=w0_begin()
    e('s_lshr_b32 s55, s56, 1'); e('s_lshl_b32 s55, s55, 2'); wait('s55',1,20); stamp(8)
    e('v_lshrrev_b32 v5, 5, v0'); e('v_and_b32 v6, 31, v0')
    e('s_mul_i32 s55, s56, 3168'); e(f's_add_u32 s55, s55, {PARTA}')
    e('s_mov_b32 s58, 101376'); e('v_mul_lo_u32 v7, v5, s58')
    e('s_lshl_b32 s58, s57, 7'); e('v_lshl_add_u32 v8, v6, 2, v7'); e('v_add_u32 v8, s58, v8'); e('v_add_u32 v7, 0x200, v7')
    for s in range(6):
        e(f'buffer_load_dword v{96+s}, v8, {S(SWS)}, s55 offen offset:{s*528} sc1')
        e(f'buffer_load_dwordx2 v[{104+2*s}:{105+2*s}], v7, {S(SWS)}, s55 offen offset:{s*528} sc1')
    e('s_waitcnt vmcnt(0)')
    e('v_max_f32 v9, v104, v106')
    for s in range(2,6): e(f'v_max_f32 v9, v9, v{104+2*s}')
    e('v_mov_b32 v10, 0'); e('v_mov_b32 v11, 0')
    for s in range(6):
        e(f'v_sub_f32 v12, v{104+2*s}, v9'); e('v_exp_f32 v12, v12'); e('s_nop 0')
        e(f'v_fmac_f32 v10, v12, v{96+s}'); e(f'v_fmac_f32 v11, v12, v{105+2*s}')
    e('v_rcp_f32 v11, v11'); e('s_nop 0'); e('v_mul_f32 v10, v10, v11')
    e('v_cvt_pk_bf16_f32 v10, v10, v10'); e('v_lshlrev_b32 v10, 16, v10')
    e('v_mul_u32_u24 v12, 144, v5'); e('v_lshl_add_u32 v12, v6, 2, v12'); e('ds_write_b32 v12, v10')
    e('v_mov_b32 v13, 0'); e('v_mul_u32_u24 v12, 144, v5'); e('ds_write_b32 v12, v13 offset:128')
    e('s_waitcnt lgkmcnt(0)')
    w0_end(l0)
    e('s_branch P3OUT')
    lab('P3B')
    l0=w0_begin()
    e('s_mov_b32 s55, 224'); wait('s55',1,64); stamp(8)
    w0_end(l0); e('s_barrier')
    e('s_lshl_b32 s55, s56, 8'); e(f's_add_u32 s55, s55, {STATB}')
    e('v_lshrrev_b32 v7, 5, v2'); e('v_lshlrev_b32 v5, 13, v7'); e('v_and_b32 v7, 31, v2'); e('v_lshl_add_u32 v5, v7, 3, v5')
    e(f'buffer_load_dwordx2 v[160:161], v5, {S(SWS)}, s55 offen sc1')
    e('v_lshrrev_b32 v8, 8, v0'); e('v_and_b32 v9, 255, v0'); e('v_lshlrev_b32 v5, 20, v8'); e('v_lshl_add_u32 v5, v9, 2, v5')
    e('s_lshl_b32 s55, s56, 15'); e(f's_add_u32 s55, s55, {PARTB}')
    for s in range(32):
        e(f'buffer_load_dword v{96+s}, v5, {S(SWS)}, s55 offen offset:{(s&3)*1024} sc1')
        if s&3==3: e('s_add_u32 s55, s55, 4096')
    e('s_waitcnt vmcnt(32)')
    e('v_mov_b32 v162, v160'); rowred('v_max_f32',[162]); e('s_nop 1')
    e('ds_swizzle_b32 v163, v162 offset:0x401F'); e('s_waitcnt lgkmcnt(0)'); e('v_max_f32 v162, v162, v163')
    e('v_sub_f32 v160, v160, v162'); e('v_exp_f32 v160, v160'); e('s_nop 0'); e('v_mul_f32 v161, v160, v161')
    rowred('v_add_f32',[161]); e('s_nop 1')
    e('ds_swizzle_b32 v163, v161 offset:0x401F'); e('s_waitcnt lgkmcnt(0)'); e('v_add_f32 v161, v161, v163')
    e('v_rcp_f32 v161, v161'); e('s_nop 0'); e('v_mul_f32 v160, v160, v161')
    e('v_lshlrev_b32 v7, 2, v2'); e('v_lshl_add_u32 v7, v1, 8, v7'); e('ds_write_b32 v7, v160 offset:36864'); e('s_waitcnt lgkmcnt(0)')
    e('v_lshlrev_b32 v6, 8, v1'); e('v_lshl_add_u32 v6, v8, 7, v6')
    for q in range(8): e(f'ds_read_b128 v[{164+4*q}:{167+4*q}], v6 offset:{36864+q*16}')
    e('v_mov_b32 v10, 0'); e('v_mov_b32 v11, 0')
    e('s_waitcnt vmcnt(0) lgkmcnt(0)')
    for s in range(32):
        e(f'v_lshlrev_b32 v12, 16, v{96+s}'); e(f'v_and_b32 v13, 0xffff0000, v{96+s}')
        e(f'v_fmac_f32 v10, v{164+s}, v12'); e(f'v_fmac_f32 v11, v{164+s}, v13')
    e('v_lshlrev_b32 v5, 11, v8'); e('v_lshl_add_u32 v5, v9, 3, v5')
    e('ds_write_b64 v5, v[10:11] offset:20736')
    e('s_waitcnt lgkmcnt(0)'); e('s_barrier')
    e('v_lshrrev_b32 v5, 2, v0'); e('v_lshlrev_b32 v5, 2, v5'); e('v_and_b32 v7, 3, v0')
    for i in range(4):
        for b in range(2): e(f'ds_read_b32 v{96+2*i+b}, v5 offset:{20736+b*2048+i*512}')
    for k in range(16): e(f'v_mov_b32 v{112+k}, 0')
    e('s_waitcnt lgkmcnt(0)')
    for i in range(4):
        for j in range(4):
            e(f'v_lshlrev_b32 v8, 16, v{40+4*i+j}'); e(f'v_and_b32 v9, 0xffff0000, v{40+4*i+j}')
            for b in range(2):
                e(f'v_fmac_f32 v{112+b*8+2*j}, v{96+2*i+b}, v8'); e(f'v_fmac_f32 v{112+b*8+2*j+1}, v{96+2*i+b}, v9')
    for ror in (4,8):
        e('s_nop 1')
        for k in range(16): e(f'v_add_f32_dpp v{112+k}, v{112+k}, v{112+k} row_ror:{ror}'+DPP)
    e('v_lshrrev_b32 v5, 4, v0'); e('v_lshlrev_b32 v5, 8, v5'); e('v_lshl_add_u32 v5, v7, 6, v5')
    e('v_cmp_gt_u32 vcc, 4, v4'); e('s_and_saveexec_b64 s[62:63], vcc')
    for k in range(4): e(f'ds_write_b128 v5, v[{112+4*k}:{115+4*k}] offset:{24832+16*k}')
    e('s_mov_b64 exec, s[62:63]')
    e('s_waitcnt lgkmcnt(0)'); e('s_barrier')
    l0=w0_begin()
    e('v_lshlrev_b32 v5, 2, v0')
    for k in range(32): e(f'ds_read_b32 v{96+k}, v5 offset:{24832+256*k}')
    e('s_waitcnt lgkmcnt(0)')
    for k in range(1,32): e(f'v_add_f32 v96, v96, v{96+k}')
    e('v_cvt_pk_bf16_f32 v96, v96, v96'); e('v_lshlrev_b32 v96, 16, v96')
    e('v_lshlrev_b32 v5, 5, v3'); e('v_and_b32 v6, 7, v0'); e('v_lshl_add_u32 v5, v6, 2, v5')
    e('v_bfe_u32 v6, v0, 3, 1'); e('v_mul_u32_u24 v6, 144, v6'); e('v_add_u32 v5, v5, v6')
    e('ds_write_b32 v5, v96'); e('v_mov_b32 v97, 0'); e('ds_write_b32 v6, v97 offset:128'); e('s_waitcnt lgkmcnt(0)')
    w0_end(l0)
    lab('P3OUT')
    e('s_barrier')
    e('v_lshlrev_b32 v5, 2, v92')
    e('v_min_u32 v5, 8, v5')
    for i in range(11):
        for b in range(2): e(f'ds_read_b32 v{96+2*i+b}, v5 offset:{b*144+i*12}')
    for k in range(8): e(f'v_mov_b32 v{120+k}, 0')
    e('s_waitcnt vmcnt(0) lgkmcnt(0)')
    for i in range(11):
        for j in range(2):
            e(f'v_lshlrev_b32 v8, 16, v{16+2*i+j}'); e(f'v_and_b32 v9, 0xffff0000, v{16+2*i+j}')
            for b in range(2):
                e(f'v_fmac_f32 v{120+4*b+2*j}, v{96+2*i+b}, v8'); e(f'v_fmac_f32 v{121+4*b+2*j}, v{96+2*i+b}, v9')
    e('v_mul_u32_u24 v5, 4608, v92'); e('v_lshl_add_u32 v5, v93, 4, v5')
    e('ds_write_b128 v5, v[120:123] offset:1024'); e('ds_write_b128 v5, v[124:127] offset:3328')
    e('s_waitcnt lgkmcnt(0)'); e('s_barrier')
    e('v_cmp_gt_u32 vcc, 0x120, v0'); e('s_and_saveexec_b64 s[62:63], vcc'); l2=U('OSK'); e(f's_cbranch_execz {l2}')
    e('v_lshlrev_b32 v5, 4, v0')
    for g in range(3): e(f'ds_read_b128 v[{96+4*g}:{99+4*g}], v5 offset:{1024+4608*g}')
    e('s_waitcnt lgkmcnt(0)')
    for g in range(1,3):
        for k in range(4): e(f'v_add_f32 v{96+k}, v{96+k}, v{96+4*g+k}')
    e('s_mul_i32 s55, s2, 4608'); e(f's_add_u32 s55, s55, {OUTP}')
    e(f'buffer_store_dwordx4 v[96:99], v5, {S(SWS)}, s55 offen sc1')
    lab(l2); e('s_mov_b64 exec, s[62:63]')
    e('s_waitcnt vmcnt(0)'); e('s_barrier')
    l0=w0_begin()
    e('s_and_b32 s55, s2, 3'); e('s_lshl_b32 s55, s55, 2'); e('s_add_u32 s55, s55, 228'); signal('s55'); stamp(9)
    w0_end(l0)
    e('s_cmp_ge_u32 s2, 36'); e('s_cbranch_scc1 ENDS')
    l0=w0_begin()
    e('s_mov_b32 s55, 228'); wait('s55',4,64); stamp(10)
    w0_end(l0)
    e('s_barrier')
    e('s_cmp_ge_u32 s2, 18'); e('s_cselect_b32 s56, 1, 0')
    e('s_mul_i32 s57, s56, 18'); e('s_sub_u32 s57, s2, s57'); e('s_lshl_b32 s57, s57, 6')
    e('v_add_u32 v7, s57, v2')
    e('s_mul_i32 s55, s56, 589824'); e(f's_add_u32 s55, s55, {OUTP}')
    e('s_mov_b32 s58, 73728'); e('v_mul_lo_u32 v8, v1, s58'); e('v_lshl_add_u32 v8, v7, 2, v8')
    for k in range(16):
        e(f'buffer_load_dword v{96+k}, v8, {S(SWS)}, s55 offen sc1'); e('s_add_u32 s55, s55, 4608')
    e('s_waitcnt vmcnt(0)')
    for k in range(1,16): e(f'v_add_f32 v96, v96, v{96+k}')
    e('v_lshlrev_b32 v5, 2, v0'); e('ds_write_b32 v5, v96 offset:32768'); e('s_waitcnt lgkmcnt(0)'); e('s_barrier')
    e('s_cmp_lg_u32 s60, 0'); e('s_cbranch_scc1 END')
    for w in range(8): e(f'ds_read_b32 v{96+w}, v5 offset:{32768+256*w}')
    e('s_waitcnt lgkmcnt(0)')
    for w in range(1,8): e(f'v_add_f32 v96, v96, v{96+w}')
    e('v_cvt_pk_bf16_f32 v96, v96, v96')
    e('v_cmp_le_u32 vcc, 0x240, v7'); e('v_mov_b32 v6, 0x240'); e('s_nop 1'); e('v_cndmask_b32 v6, 0, v6, vcc')
    e('v_add_u32 v6, v6, v7'); e('s_mul_i32 s58, s56, 576'); e('v_add_u32 v6, s58, v6'); e('v_lshlrev_b32 v6, 1, v6')
    e(f'buffer_store_short v96, v6, {S(SOUT)}, 0 offen')

hdr=open(f'cdna_kernels/{NAME}.s.ref').read().split('\n')
hdr=[h for h in hdr if h.startswith(';') and '@launch' not in h and not h.startswith('; Override') and not h.startswith('; grid=ceil')]
L+=hdr
L+=['; @launch grid=(256,1,1) block=(512,1,1) lds=106496','.amdgcn_target "amdgcn-amd-amdhsa--gfx950"','.text']
body()
L+=['.section .rodata,"a"','.p2align 6',f'.amdhsa_kernel {NAME}_kernel','  .amdhsa_next_free_vgpr 256','  .amdhsa_next_free_sgpr 102','  .amdhsa_accum_offset 256',
    '  .amdhsa_group_segment_fixed_size 0','  .amdhsa_kernarg_size 112','  .amdhsa_user_sgpr_count 2','  .amdhsa_user_sgpr_kernarg_segment_ptr 1',
    '  .amdhsa_system_sgpr_workgroup_id_x 1','.end_amdhsa_kernel']
open(OUT,'w').write('\n'.join(L)+'\n')
```

```python
import struct, os
NAME='concat_heads__gqa_block_cached__compressed_kv_cla__decode'
OUT=os.environ.get('OUTF','') or f'cdna_kernels/{NAME}.s'
L=[]
def e(s): L.append('    '+s)
def lab(s): L.append(s+':')
def f32(x): return '0x%08x'%struct.unpack('<I',struct.pack('<f',x))[0]
CS=f32(1.4426950408889634/(128**0.5))
QA=0; QB=16384; QP=32768; PARTA=98304; STATB=368640; PARTB=393216; OUTP=4587520
WSSZ=8*1024*1024
DPP=' row_mask:0xf bank_mask:0xf'
HUGE='0x7fffff00'
SX,SW,SUK,SK,SV,SC,SWS,SDBG,SWO,SUV,SOUT=8,12,16,20,24,28,32,36,40,44,48
uid=[0]
STAMP=os.environ.get('STAMP','')=='1'
def stamp(i):
    if STAMP: e(f's_memrealtime s[{68+2*i}:{69+2*i}]')
def stamp_flush():
    if not STAMP: return
    l=U('SF'); e('s_cmp_lg_u32 s60, 0'); e(f's_cbranch_scc1 {l}')
    e('s_waitcnt lgkmcnt(0)'); e('s_mov_b64 exec, 1')
    e('s_lshl_b32 s55, s2, 7'); e('s_add_u32 s55, s55, 7340032'); e('v_mov_b32 v5, 0')
    for i in range(12):
        e(f'v_mov_b32 v6, s{68+2*i}'); e(f'buffer_store_dword v6, v5, {S(SWS)}, s55 offen offset:{4*i}')
    e('s_mov_b64 exec, -1')
    lab(l)

def U(p): uid[0]+=1; return f'{p}_{uid[0]}'
def srd(d, lo, size):
    e(f's_mov_b32 s{d}, s{lo}'); e(f's_and_b32 s{d+1}, s{lo+1}, 0xffff'); e(f's_mov_b32 s{d+2}, {size}'); e(f's_mov_b32 s{d+3}, 0x00020000')
def S(d): return f's[{d}:{d+3}]'
def rowred(op, regs):
    for ror in (8,4,2,1):
        e('s_nop 1')
        for r in regs: e(f'{op}_dpp v{r}, v{r}, v{r} row_ror:{ror}'+DPP)
def w0_begin():
    l=U('W0E'); e('s_cmp_lg_u32 s60, 0'); e(f's_cbranch_scc1 {l}'); return l
def w0_end(l): lab(l)
CB=0x780000
def signal(off_sgpr):
    e('s_mov_b64 s[62:63], exec'); e('s_mov_b64 exec, 1')
    e('v_mov_b32 v5, 1'); e(f'v_mov_b32 v6, {off_sgpr}'); e('v_lshlrev_b32 v6, 5, v6'); e(f'v_add_u32 v6, {CB}, v6')
    e(f'buffer_atomic_add v5, v6, {S(SWS)}, 0 offen')
    e('s_mov_b64 exec, s[62:63]')
def wait(off_sgpr, n, target, dbg=False):
    lp=U('POLL'); dn=U('PDONE')
    e('s_mov_b64 s[62:63], exec'); e(f's_mov_b64 exec, {(1<<n)-1}')
    if dbg: e('v_mov_b32 v6, 0')
    else:
        e('v_lshlrev_b32 v6, 2, v2'); e(f'v_add_u32 v6, {off_sgpr}, v6'); e('v_lshlrev_b32 v6, 5, v6'); e(f'v_add_u32 v6, {CB}, v6')
    e('s_mov_b32 s64, 0')
    lab(lp)
    e(f'buffer_load_dword v5, v6, {S(SDBG if dbg else SWS)}, 0 offen sc1')
    e('s_waitcnt vmcnt(0)')
    e(f'v_cmp_le_u32 vcc, {target}, v5')
    e('s_nop 3')
    e('s_cmp_eq_u64 vcc, exec'); e(f's_cbranch_scc1 {dn}')
    e('s_add_u32 s64, s64, 1'); e('s_cmp_gt_u32 s64, 0x20000'); e(f's_cbranch_scc1 {dn}')
    e('s_sleep 2'); e(f's_branch {lp}')
    lab(dn)
    e('s_mov_b64 exec, s[62:63]')
def init_counters():
    e(f's_add_u32 s100, s94, {CB}'); e('s_addc_u32 s101, s95, 0')
    l=U('INI'); e('s_cmp_lg_u32 s2, 0'); e(f's_cbranch_scc1 {l}'); e('s_cmp_lg_u32 s60, 0'); e(f's_cbranch_scc1 {l}')
    e('v_lshlrev_b32 v5, 7, v2'); e(f'v_add_u32 v5, {CB}, v5'); e('v_mov_b32 v6, 0')
    e(f'buffer_store_dword v6, v5, {S(SWS)}, 0 offen sc1'); e('s_waitcnt vmcnt(0)')
    e('s_mov_b64 exec, 1'); e('v_mov_b32 v5, 1'); e('v_mov_b32 v6, 0')
    e(f'buffer_atomic_add v5, v6, {S(SDBG)}, 0 offen'); e('s_mov_b64 exec, -1')
    lab(l)
def wait_init():
    wait('0',1,1,dbg=True)

def body():
    L.append(f'.globl {NAME}_kernel'); L.append('.p2align 8'); L.append(f'.type {NAME}_kernel,@function'); lab(f'{NAME}_kernel')
    e('s_cmp_ge_u32 s2, 256'); e('s_cbranch_scc1 END')
    e('s_load_dwordx16 s[68:83], s[0:1], 0'); e('s_load_dwordx8 s[84:91], s[0:1], 64'); e('s_load_dwordx4 s[92:95], s[0:1], 96')
    e('v_lshrrev_b32 v1, 6, v0'); e('v_and_b32 v2, 63, v0'); e('v_lshrrev_b32 v3, 4, v2'); e('v_and_b32 v4, 15, v2')
    for r in (12,13,14,15): e(f'v_mov_b32 v{r}, {HUGE}')
    e('v_readfirstlane_b32 s60, v1')
    e(f's_mov_b32 s61, {CS}')
    e('s_waitcnt lgkmcnt(0)')
    e('s_cmp_lt_u32 s2, 128')
    e('s_cselect_b64 s[4:5], s[68:69], s[78:79]'); e('s_cselect_b64 s[6:7], s[74:75], s[82:83]'); e('s_cselect_b64 s[52:53], s[76:77], s[88:89]')
    srd(SX,4,2304); srd(SW,6,576*8192); srd(SUK,84,512*8192); srd(SK,70,2*16*4096*256); srd(SV,72,2*16*4096*256)
    srd(SC,80,2*4096*1024); srd(SWS,94,WSSZ); srd(SDBG,92,256); srd(SWO,52,4096*1152); srd(SUV,86,512*8192); srd(SOUT,90,4608)
    init_counters()
    stamp(0)
    e('s_and_b32 s3, s2, 127'); e('s_lshl_b32 s54, s3, 6')
    e('v_lshrrev_b32 v7, 2, v0'); e('v_and_b32 v8, 3, v0')
    e('v_lshlrev_b32 v9, 13, v7'); e('v_lshl_add_u32 v9, v8, 4, v9'); e('v_add_u32 v9, s54, v9')
    e('v_lshlrev_b32 v10, 1, v7')
    e('s_mov_b32 s55, 0')
    for i in range(5):
        e(f'buffer_load_dwordx4 v[{16+4*i}:{19+4*i}], v9, {S(SW)}, s55 offen nt'); e('s_add_u32 s55, s55, 1048576')
    for i in range(5):
        for b in range(2): e(f'buffer_load_ushort v{36+2*i+b}, v10, {S(SX)}, 0 offen offset:{b*1152+i*256}')
    e('s_lshr_b32 s56, s2, 3'); e('s_and_b32 s57, s2, 7')
    e('v_lshrrev_b32 v11, 4, v0'); e('v_lshlrev_b32 v11, 13, v11'); e('v_lshl_add_u32 v11, v4, 4, v11')
    e('s_lshl_b32 s55, s57, 19'); e('s_lshl_b32 s58, s56, 8'); e('s_add_u32 s55, s55, s58')
    for i in range(2):
        e(f'buffer_load_dwordx4 v[{64+4*i}:{67+4*i}], v11, {S(SUK)}, s55 offen nt'); e('s_add_u32 s55, s55, 262144')
    e('s_cmp_ge_u32 s2, 192'); e('s_cbranch_scc1 ROLE_B')
    e('s_mul_hi_u32 s96, s2, 715827883'); e('s_mul_i32 s97, s96, 6'); e('s_sub_u32 s97, s2, s97')
    e('s_lshl_b32 s55, s96, 20'); e('s_mul_i32 s58, s97, 172032'); e('s_add_u32 s55, s55, s58')
    e('s_sub_u32 s58, s60, 1'); e('s_mul_i32 s58, s58, 24576'); e('s_add_u32 s55, s55, s58'); e('s_mov_b32 s98, 6')
    e('s_cmp_lg_u32 s60, 0'); e('s_cbranch_scc1 AROLE_OK')
    e('s_lshl_b32 s55, s96, 20'); e('s_add_u32 s55, s55, 1032192')
    e('s_cmp_eq_u32 s97, 0'); e('s_cselect_b32 s98, 4, 0')
    lab('AROLE_OK')
    e('v_lshlrev_b32 v13, 8, v4'); e('v_lshl_add_u32 v13, v3, 4, v13'); e('v_add_u32 v13, s55, v13')
    e('v_lshlrev_b32 v12, 4, v2'); e('v_add_u32 v12, s55, v12')
    e('s_branch PF_DONE')
    lab('ROLE_B')
    e('s_sub_u32 s96, s2, 192')
    e('s_lshl_b32 s55, s96, 17')
    e('s_sub_u32 s58, s60, 1'); e('s_max_i32 s58, s58, 0'); e('s_mul_i32 s58, s58, 9216'); e('s_add_u32 s55, s55, s58')
    e('v_lshlrev_b32 v12, 4, v2'); e('v_add_u32 v12, s55, v12')
    lab('PF_DONE')
    for k in range(16): e(f'v_mov_b32 v{46+k}, 0')
    e('s_waitcnt vmcnt(2)')
    lab('P1GO'); stamp(1)
    for i in range(10): e(f'v_lshlrev_b32 v{36+i}, 16, v{36+i}')
    for i in range(5):
        for j in range(4):
            e(f'v_lshlrev_b32 v62, 16, v{16+4*i+j}'); e(f'v_and_b32 v63, 0xffff0000, v{16+4*i+j}')
            for b in range(2):
                e(f'v_fmac_f32 v{46+b*8+2*j}, v{36+2*i+b}, v62'); e(f'v_fmac_f32 v{46+b*8+2*j+1}, v{36+2*i+b}, v63')
    for ror in (4,8):
        e('s_nop 1')
        for k in range(16): e(f'v_add_f32_dpp v{46+k}, v{46+k}, v{46+k} row_ror:{ror}'+DPP)
    e('v_lshrrev_b32 v5, 4, v0'); e('v_lshlrev_b32 v5, 8, v5'); e('v_lshl_add_u32 v5, v8, 6, v5')
    e('v_cmp_gt_u32 vcc, 4, v4'); e('s_and_saveexec_b64 s[62:63], vcc')
    for k in range(4): e(f'ds_write_b128 v5, v[{46+4*k}:{49+4*k}] offset:{16*k}')
    e('s_mov_b64 exec, s[62:63]')
    e('s_waitcnt lgkmcnt(0)'); e('s_barrier')
    l0=w0_begin()
    e('v_lshlrev_b32 v5, 2, v0')
    for k in range(32): e(f'ds_read_b32 v{16+k}, v5 offset:{256*k}')
    e('s_waitcnt lgkmcnt(0)')
    for k in range(1,32): e(f'v_add_f32 v16, v16, v{16+k}')
    e('v_cvt_pk_bf16_f32 v16, v16, v16')
    e('v_lshlrev_b32 v5, 4, v3'); e('v_and_b32 v6, 7, v0'); e('v_lshl_add_u32 v5, v6, 1, v5')
    e('v_bfe_u32 v6, v0, 3, 1'); e('v_lshl_add_u32 v5, v6, 13, v5')
    e('s_lshr_b32 s55, s2, 7'); e('s_lshl_b32 s55, s55, 14'); e('s_add_u32 s55, s55, s54')
    e(f'buffer_store_short v16, v5, {S(SWS)}, s55 offen sc1')
    e('s_waitcnt vmcnt(0)')
    e('s_lshr_b32 s55, s2, 3'); e('s_lshl_b32 s55, s55, 2')
    e('s_sub_u32 s58, s2, 128'); e('s_lshr_b32 s58, s58, 2'); e('s_lshl_b32 s58, s58, 2'); e('s_add_u32 s58, s58, 64')
    e('s_cmp_lt_u32 s2, 128'); e('s_cselect_b32 s55, s55, s58')
    e('s_mov_b32 s59, s55'); wait_init(); e('s_mov_b32 s55, s59')
    signal('s55'); stamp(2)
    e('s_lshl_b32 s55, s56, 2'); e('s_add_u32 s55, s55, 64')
    wait('s55',1,4); stamp(3)
    e('v_lshlrev_b32 v5, 13, v3'); e('v_lshl_add_u32 v5, v4, 4, v5')
    e('s_lshl_b32 s55, s56, 8'); e(f's_add_u32 s55, s55, {QB}')
    e(f'buffer_load_dwordx4 v[16:19], v5, {S(SWS)}, s55 offen sc1')
    e('v_lshlrev_b32 v6, 4, v2')
    e('s_waitcnt vmcnt(0)'); e('ds_write_b128 v6, v[16:19] offset:8192'); e('s_waitcnt lgkmcnt(0)')
    w0_end(l0)
    e('s_barrier')
    e('v_lshlrev_b32 v5, 4, v4')
    e('ds_read_b128 v[16:19], v5 offset:8192'); e('ds_read_b128 v[20:23], v5 offset:8448')
    for k in range(4): e(f'v_mov_b32 v{46+k}, 0')
    e('s_waitcnt vmcnt(0) lgkmcnt(0)')
    lab('P1BGO')
    for k in range(4):
        for i in range(2):
            for b in range(2): e(f'v_dot2_f32_bf16 v{46+2*i+b}, v{64+4*i+k}, v{16+4*b+k}, v{46+2*i+b}')
    e('s_nop 3')
    rowred('v_add_f32',[46,47,48,49])
    e('s_nop 1')
    e('v_lshrrev_b32 v5, 4, v0'); e('v_lshlrev_b32 v5, 2, v5')
    for i in range(2):
        for b in range(2): e(f'ds_write_b32 v5, v{46+2*i+b} offset:{9216+b*256+i*128}')
    e('s_waitcnt lgkmcnt(0)'); e('s_barrier')
    l0=w0_begin()
    e('v_lshlrev_b32 v5, 2, v2')
    e('ds_read_b32 v16, v5 offset:9216'); e('ds_read_b32 v17, v5 offset:9472'); e('s_waitcnt lgkmcnt(0)')
    e('v_cvt_pk_bf16_f32 v16, v16, v16'); e('v_cvt_pk_bf16_f32 v17, v17, v17')
    e('s_lshl_b32 s55, s56, 10'); e('s_lshl_b32 s58, s57, 7'); e('s_add_u32 s55, s55, s58'); e(f's_add_u32 s55, s55, {QP}')
    e('s_add_u32 s58, s55, 32768')
    e('v_lshlrev_b32 v5, 1, v2')
    e(f'buffer_store_short v16, v5, {S(SWS)}, s55 offen sc1'); e(f'buffer_store_short v17, v5, {S(SWS)}, s58 offen sc1')
    e('s_waitcnt vmcnt(0)')
    e('s_and_b32 s55, s2, 7'); e('s_lshl_b32 s55, s55, 2'); e('s_add_u32 s55, s55, 192')
    signal('s55'); stamp(4)
    w0_end(l0)
    e('s_cmp_ge_u32 s2, 192'); e('s_cbranch_scc1 ATT_B')
    attA()
    e('s_branch P3')
    lab('ATT_B')
    attB()
    lab('P3')
    p3()
    stamp(11)
    lab('ENDS'); stamp_flush()
    lab('END'); e('s_endpgm')

OOB='0x7fff0000'
def kissue():
    for t in range(6):
        e(f's_cmp_gt_u32 s98, {t}'); e(f's_mov_b32 s55, {t*4096}'); e(f's_cselect_b32 s55, s55, {OOB}')
        for ks in range(4):
            r=64+16*t+4*ks
            e(f'buffer_load_dwordx4 v[{r}:{r+3}], v13, {S(SK)}, s55 offen offset:{ks*64} nt')
def vissue():
    for i in range(24):
        if i%4==0:
            e(f's_cmp_gt_u32 s98, {i//4}'); e(f's_mov_b32 s55, {(i//4)*4096}'); e(f's_cselect_b32 s55, s55, {OOB}')
        e(f'buffer_load_dwordx4 v[{160+4*i}:{163+4*i}], v12, {S(SV)}, s55 offen offset:{(i%4)*1024} nt')
def cissue():
    for p in range(2):
        for i in range(10):
            if i%4==0 or i==9: e(f's_mov_b32 s55, {p*65536+(i//4)*4096}')
            if i==9: e('s_cmp_eq_u32 s60, 7'); e(f's_cselect_b32 s55, s55, {OOB}')
            r=64+40*p+4*i
            e(f'buffer_load_dwordx4 v[{r}:{r+3}], v12, {S(SC)}, s55 offen offset:{(i%4)*1024} nt')

def late_loads():
    e('s_mov_b32 s55, 29826162'); e('v_mul_hi_u32 v92, v0, s55')
    e('v_mul_u32_u24 v93, 144, v92'); e('v_sub_u32 v93, v0, v93')
    e('v_mul_u32_u24 v5, 1152, v92'); e('v_lshl_add_u32 v5, v93, 3, v5')
    e('v_cmp_gt_u32 vcc, 0x1b0, v0'); e(f'v_mov_b32 v6, {HUGE}'); e('s_nop 1'); e('v_cndmask_b32 v5, v6, v5, vcc')
    e('s_mul_i32 s55, s3, 36864')
    for i in range(11):
        e(f'buffer_load_dwordx2 v[{16+2*i}:{17+2*i}], v5, {S(SWO)}, s55 offen nt'); e('s_add_u32 s55, s55, 3456')
    e('v_lshrrev_b32 v5, 2, v0'); e('v_lshlrev_b32 v5, 13, v5'); e('v_and_b32 v6, 3, v0'); e('v_lshl_add_u32 v5, v6, 4, v5')
    e('s_cmp_lt_u32 s2, 128'); e(f's_cselect_b32 s55, {HUGE}, 0'); e('v_add_u32 v5, s55, v5')
    e('s_lshl_b32 s55, s3, 6')
    for i in range(4):
        e(f'buffer_load_dwordx4 v[{40+4*i}:{43+4*i}], v5, {S(SUV)}, s55 offen nt'); e('s_add_u32 s55, s55, 1048576')

def attA():
    e('s_cmp_eq_u32 s60, 0'); e('s_cbranch_scc1 AK_SKIP')
    kissue()
    lab('AK_SKIP')
    l0=w0_begin()
    e('s_and_b32 s55, s96, 15'); e('s_lshl_b32 s55, s55, 2')
    wait('s55',1,8); stamp(5)
    kissue()
    w0_end(l0); e('s_barrier')
    e('v_lshlrev_b32 v5, 8, v4'); e('v_lshl_add_u32 v5, v3, 4, v5'); e('s_lshl_b32 s55, s96, 9')
    e('v_cmp_gt_u32 vcc, 2, v4'); e(f'v_mov_b32 v6, {HUGE}'); e('s_nop 1'); e('v_cndmask_b32 v5, v6, v5, vcc')
    for ks in range(4): e(f'buffer_load_dwordx4 v[{16+4*ks}:{19+4*ks}], v5, {S(SWS)}, s55 offen offset:{ks*64} sc1')
    vissue()
    e('s_waitcnt vmcnt(24)')
    for t in range(6):
        for ks in range(4):
            r=64+16*t+4*ks
            c='0' if ks==0 else f'v[{32+4*t}:{35+4*t}]'
            e(f'v_mfma_f32_16x16x32_bf16 v[{32+4*t}:{35+4*t}], v[{16+4*ks}:{19+4*ks}], v[{r}:{r+3}], {c}')
    e('s_nop 7'); e('s_nop 3'); stamp(6)
    for t in range(6):
        e(f's_cmp_gt_u32 s98, {t}'); e('s_cselect_b32 s55, 0, 0xff800000')
        for h in range(2): e(f'v_add_f32 v{32+4*t+h}, s55, v{32+4*t+h}')
    for h in range(2):
        e(f'v_max3_f32 v{8+h}, v{32+h}, v{36+h}, v{40+h}'); e(f'v_max3_f32 v{8+h}, v{8+h}, v{44+h}, v{48+h}'); e(f'v_max_f32 v{8+h}, v{8+h}, v{52+h}')
        e(f'v_max_f32 v{8+h}, 0xf149f2ca, v{8+h}')
    rowred('v_max_f32',[8,9])
    e('s_nop 1')
    for h in range(2):
        for t in range(6):
            e(f'v_sub_f32 v{32+4*t+h}, v{32+4*t+h}, v{8+h}'); e(f'v_mul_f32 v{32+4*t+h}, s61, v{32+4*t+h}')
    for h in range(2):
        for t in range(6): e(f'v_exp_f32 v{32+4*t+h}, v{32+4*t+h}')
    e('s_nop 0')
    for h in range(2):
        e(f'v_add_f32 v{10+h}, v{32+h}, v{36+h}'); e(f'v_add_f32 v7, v{40+h}, v{44+h}'); e(f'v_add_f32 v{10+h}, v{10+h}, v7'); e(f'v_add_f32 v7, v{48+h}, v{52+h}'); e(f'v_add_f32 v{10+h}, v{10+h}, v7')
    rowred('v_add_f32',[10,11])
    e('v_mul_u32_u24 v5, 768, v1'); e('v_lshl_add_u32 v5, v2, 3, v5')
    e('v_cmp_gt_u32 vcc, 16, v2'); e('s_and_saveexec_b64 s[62:63], vcc')
    for t in range(6): e(f'ds_write_b64 v5, v[{32+4*t}:{33+4*t}] offset:{10240+t*128}')
    e('v_lshlrev_b32 v6, 4, v1'); e('ds_write_b128 v6, v[8:11] offset:16384')
    e('s_mov_b64 exec, s[62:63]')
    for k in range(16): e(f'v_mov_b32 v{56+k}, 0')
    e('s_waitcnt lgkmcnt(0)')
    e('v_mul_u32_u24 v5, 768, v1'); e('v_lshl_add_u32 v5, v3, 3, v5')
    for half in range(2):
        for ii in range(12): e(f'ds_read_b64 v[{96+2*ii}:{97+2*ii}], v5 offset:{10240+(half*12+ii)*32}')
        for ii in range(12):
            i=half*12+ii; pr=96+2*ii; vr=160+4*i
            e(f's_waitcnt vmcnt({23-i}) lgkmcnt({11-ii})')
            for j in range(4):
                e(f'v_lshlrev_b32 v6, 16, v{vr+j}'); e(f'v_and_b32 v7, 0xffff0000, v{vr+j}')
                e(f'v_pk_fma_f32 v[{56+2*j}:{57+2*j}], v[6:7], v[{pr}:{pr+1}], v[{56+2*j}:{57+2*j}] op_sel:[0,0,0] op_sel_hi:[1,0,1]')
                e(f'v_pk_fma_f32 v[{64+2*j}:{65+2*j}], v[6:7], v[{pr}:{pr+1}], v[{64+2*j}:{65+2*j}] op_sel:[0,1,0] op_sel_hi:[1,1,1]')
    late_loads()
    e('v_lshl_add_u32 v5, v1, 2, v3'); e('v_lshlrev_b32 v5, 10, v5'); e('v_lshl_add_u32 v5, v4, 5, v5')
    for h in range(2):
        e(f'ds_write_b128 v5, v[{56+8*h}:{59+8*h}] offset:{17408+512*h}'); e(f'ds_write_b128 v5, v[{60+8*h}:{63+8*h}] offset:{17408+512*h+16}')
    e('s_waitcnt lgkmcnt(0)'); e('s_barrier')
    lsk=U('ASK')
    e('s_cmp_ge_u32 s60, 4'); e(f's_cbranch_scc1 {lsk}')
    e('v_lshrrev_b32 v5, 7, v0'); e('v_and_b32 v6, 127, v0'); e('v_lshlrev_b32 v7, 2, v5')
    for w in range(8):
        e(f'ds_read_b32 v{96+w}, v7 offset:{16384+16*w}'); e(f'ds_read_b32 v{104+w}, v7 offset:{16384+16*w+8}')
    e('v_lshlrev_b32 v8, 9, v5'); e('v_lshl_add_u32 v8, v6, 2, v8')
    for wg in range(32): e(f'ds_read_b32 v{112+wg}, v8 offset:{17408+1024*wg}')
    e('s_waitcnt lgkmcnt(0)')
    e('v_max_f32 v9, v96, v97')
    for w in range(2,8): e(f'v_max_f32 v9, v9, v{96+w}')
    for w in range(8):
        e(f'v_sub_f32 v{96+w}, v{96+w}, v9'); e(f'v_mul_f32 v{96+w}, s61, v{96+w}'); e(f'v_exp_f32 v{96+w}, v{96+w}')
    e('v_mov_b32 v10, 0'); e('v_mov_b32 v11, 0')
    for w in range(8):
        e(f'v_add_f32 v12, v{112+4*w}, v{113+4*w}'); e(f'v_add_f32 v13, v{114+4*w}, v{115+4*w}'); e('v_add_f32 v12, v12, v13')
        e(f'v_fmac_f32 v10, v{96+w}, v12'); e(f'v_fmac_f32 v11, v{96+w}, v{104+w}')
    e('v_mul_f32 v9, s61, v9')
    e('s_mul_i32 s55, s96, 12'); e('s_add_u32 s55, s55, s97'); e('s_mul_i32 s55, s55, 528'); e(f's_add_u32 s55, s55, {PARTA}')
    e('v_mul_u32_u24 v12, 3168, v5'); e('v_lshl_add_u32 v12, v6, 2, v12')
    e(f'buffer_store_dword v10, v12, {S(SWS)}, s55 offen sc1')
    e('v_cmp_eq_u32 vcc, 0, v6'); e('s_and_saveexec_b64 s[62:63], vcc'); l2=U('ASK2'); e(f's_cbranch_execz {l2}')
    e('v_mov_b32 v10, v9')
    e(f'buffer_store_dwordx2 v[10:11], v12, {S(SWS)}, s55 offen offset:512 sc1')
    lab(l2); e('s_mov_b64 exec, s[62:63]')
    lab(lsk)
    e('s_waitcnt vmcnt(0)'); e('s_barrier')
    l0=w0_begin()
    e('s_and_b32 s55, s96, 15'); e('s_lshl_b32 s55, s55, 2'); signal('s55'); stamp(7)
    w0_end(l0)

PBUF=0; SMAX=4608; LSUM=5120; QL=5632; CT=38912
def attB():
    e('s_cmp_eq_u32 s60, 0'); e('s_cbranch_scc1 BC_SKIP')
    cissue()
    lab('BC_SKIP')
    l0=w0_begin()
    e('s_mov_b32 s55, 192'); wait('s55',8,32); stamp(5)
    e('s_lshr_b32 s55, s96, 5'); e('s_lshl_b32 s55, s55, 15'); e(f's_add_u32 s55, s55, {QP}')
    e('v_lshlrev_b32 v5, 4, v2')
    for h in range(32):
        e(f'buffer_load_dwordx4 v[{64+4*h}:{67+4*h}], v5, {S(SWS)}, s55 offen offset:{(h%4)*1024} sc1')
        if h%4==3: e('s_add_u32 s55, s55, 4096')
    e(f'v_add_u32 v6, {QL}, v5')
    for h in range(32):
        e(f's_waitcnt vmcnt({31-h})'); e(f'ds_write_b128 v6, v[{64+4*h}:{67+4*h}] offset:{h*1040}')
    w0_end(l0)
    e('v_subrev_u32 v6, 1, v1'); e('v_max_i32 v6, 0, v6'); e('v_mul_u32_u24 v6, 9360, v6'); e('v_lshl_add_u32 v6, v2, 4, v6'); e(f'v_add_u32 v6, {CT}, v6')
    e('v_and_b32 v7, 1, v1'); e('v_lshrrev_b32 v8, 1, v1')
    e('v_lshl_add_u32 v9, v7, 4, v4'); e('v_mul_u32_u24 v9, 1040, v9'); e('v_lshl_add_u32 v9, v3, 4, v9'); e(f'v_add_u32 v9, {QL}, v9')
    e('v_lshl_add_u32 v10, v8, 4, v4'); e('v_mul_u32_u24 v10, 1040, v10'); e('v_lshl_add_u32 v10, v3, 4, v10'); e(f'v_add_u32 v10, {CT}, v10')
    e('v_lshlrev_b32 v11, 7, v8'); e('v_lshl_add_u32 v11, v7, 6, v11'); e('v_lshl_add_u32 v11, v3, 4, v11')
    e('v_lshlrev_b32 v16, 4, v3')
    e('v_lshl_add_u32 v17, v7, 2, v3'); e('v_mul_u32_u24 v17, 576, v17'); e('v_lshl_add_u32 v18, v8, 4, v4'); e('v_lshl_add_u32 v17, v18, 1, v17')
    e('v_mul_u32_u24 v18, 144, v4'); e('v_lshl_add_u32 v18, v3, 4, v18')
    e('v_lshrrev_b32 v19, 2, v4'); e('v_lshl_add_u32 v19, v3, 3, v19'); e('v_mul_u32_u24 v19, 1040, v19')
    e('v_and_b32 v20, 3, v4'); e('v_lshl_add_u32 v19, v20, 3, v19'); e('v_lshl_add_u32 v19, v1, 7, v19'); e(f'v_add_u32 v19, {CT}, v19')
    for k in range(8): e(f'v_mov_b32 v{20+k}, 0xff800000')
    for k in range(4): e(f'v_mov_b32 v{28+k}, 0')
    for k in range(32): e(f'v_mov_b32 v{224+k}, 0')
    for p in range(2):
        e(f's_waitcnt vmcnt({10-10*p})')
        e('s_barrier')
        lw=U('CW'); e('s_cmp_eq_u32 s60, 0'); e(f's_cbranch_scc1 {lw}')
        for i in range(9): e(f'ds_write_b128 v6, v[{64+40*p+4*i}:{67+40*p+4*i}] offset:{i*1040}')
        e('s_cmp_lg_u32 s60, 7'); e(f's_cbranch_scc1 {lw}')
        e(f'ds_write_b128 v6, v[{64+40*p+36}:{67+40*p+36}] offset:{9*1040}')
        lab(lw)
        e('s_waitcnt lgkmcnt(0)'); e('s_barrier')
        if p==0: stamp(6)
        if p==1: stamp(10)
        for half in range(4):
            for k in range(4):
                ks=half*4+k
                e(f'ds_read_b128 v[{32+8*k}:{35+8*k}], v9 offset:{ks*64}'); e(f'ds_read_b128 v[{36+8*k}:{39+8*k}], v10 offset:{ks*64}')
            for k in range(4):
                ks=half*4+k
                e(f's_waitcnt lgkmcnt({6-2*k})')
                c='0' if ks==0 else 'v[12:15]'
                e(f'v_mfma_f32_16x16x32_bf16 v[12:15], v[{32+8*k}:{35+8*k}], v[{36+8*k}:{39+8*k}], {c}')
            e('s_nop 3')
        e('s_nop 7'); e('s_nop 3')
        for r in range(4): e(f'v_mov_b32 v{32+r}, v{12+r}')
        rowred('v_max_f32',[32,33,34,35])
        e('s_nop 1')
        e(f'ds_write_b128 v11, v[32:35] offset:{SMAX}')
        e('s_waitcnt lgkmcnt(0)'); e('s_barrier')
        for mt in range(2):
            for nt in range(4): e(f'ds_read_b128 v[{32+16*mt+4*nt}:{35+16*mt+4*nt}], v16 offset:{SMAX+nt*128+mt*64}')
        e('s_waitcnt lgkmcnt(0)')
        for mt in range(2):
            for r in range(4):
                b0=32+16*mt+r
                e(f'v_max_f32 v{b0}, v{b0}, v{b0+4}'); e(f'v_max3_f32 v{b0}, v{b0}, v{b0+8}, v{b0+12}')
                e(f'v_max_f32 v{b0}, v{b0}, v{20+4*mt+r}')
                e(f'v_sub_f32 v{b0+4}, v{20+4*mt+r}, v{b0}'); e(f'v_mul_f32 v{b0+4}, s61, v{b0+4}'); e(f'v_exp_f32 v{b0+4}, v{b0+4}')
                e(f'v_mov_b32 v{20+4*mt+r}, v{b0}')
        e('v_cmp_eq_u32 vcc, 1, v7'); e('s_nop 1')
        for r in range(4):
            e(f'v_cndmask_b32 v{40+r}, v{20+r}, v{24+r}, vcc'); e(f'v_cndmask_b32 v{44+r}, v{36+r}, v{52+r}, vcc')
        for r in range(4):
            e(f'v_sub_f32 v{12+r}, v{12+r}, v{40+r}'); e(f'v_mul_f32 v{12+r}, s61, v{12+r}'); e(f'v_exp_f32 v{12+r}, v{12+r}')
        e('s_nop 0')
        for r in range(4):
            e(f'v_fma_f32 v{28+r}, v{28+r}, v{44+r}, v{12+r}'); e(f'v_cvt_pk_bf16_f32 v{40+r}, v{12+r}, v{12+r}')
        for r in range(4): e(f'ds_write_b16 v17, v{40+r} offset:{PBUF+144*r}')
        for mt in range(2):
            for n in range(4):
                for r in range(4): e(f'v_mul_f32 v{224+(mt*4+n)*4+r}, v{36+16*mt+r}, v{224+(mt*4+n)*4+r}')
        e('s_waitcnt lgkmcnt(0)'); e('s_barrier')
        for mt in range(2):
            for ks in range(2): e(f'ds_read_b128 v[{32+(mt*2+ks)*4}:{35+(mt*2+ks)*4}], v18 offset:{PBUF+mt*2304+ks*64}')
        for grp in range(2):
            for nn in range(2):
                n=grp*2+nn
                for ks in range(2):
                    r=48+nn*8+ks*4
                    e(f'ds_read_b64_tr_b16 v[{r}:{r+1}], v19 offset:{ks*32*1040+n*32}')
                    e(f'ds_read_b64_tr_b16 v[{r+2}:{r+3}], v19 offset:{ks*32*1040+4*1040+n*32}')
            for nn in range(2):
                n=grp*2+nn
                e(f's_waitcnt lgkmcnt({4-4*nn})')
                for ks in range(2):
                    for mt in range(2):
                        a_=224+(mt*4+n)*4
                        e(f'v_mfma_f32_16x16x32_bf16 v[{a_}:{a_+3}], v[{32+(mt*2+ks)*4}:{35+(mt*2+ks)*4}], v[{48+nn*8+ks*4}:{51+nn*8+ks*4}], v[{a_}:{a_+3}]')
            e('s_nop 3')
        e('s_nop 7'); e('s_nop 3')
    stamp(11)
    rowred('v_add_f32',[28,29,30,31])
    e('s_nop 1')
    e(f'ds_write_b128 v11, v[28:31] offset:{LSUM}')
    e('s_lshr_b32 s55, s96, 5'); e('s_lshl_b32 s55, s55, 20'); e('s_and_b32 s58, s96, 31'); e('s_lshl_b32 s58, s58, 10'); e('s_add_u32 s55, s55, s58'); e(f's_add_u32 s55, s55, {PARTB}')
    e('s_barrier')
    e('v_mul_u32_u24 v32, 8256, v3'); e('v_lshl_add_u32 v32, v1, 8, v32'); e('v_lshl_add_u32 v32, v4, 2, v32'); e(f'v_add_u32 v32, {CT}, v32')
    for mt in range(2):
        for r in range(4):
            for n in range(4): e(f'ds_write_b32 v32, v{224+(mt*4+n)*4+r} offset:{(mt*16+r)*2064+n*64}')
    e('s_waitcnt lgkmcnt(0)'); e('s_barrier')
    e('v_mul_u32_u24 v35, 2064, v1'); e('v_lshl_add_u32 v35, v2, 5, v35'); e(f'v_add_u32 v35, {CT}, v35')
    e('v_lshlrev_b32 v36, 15, v1'); e('v_lshl_add_u32 v36, v2, 4, v36')
    for k in range(4):
        e(f'ds_read_b128 v[{64+8*k}:{67+8*k}], v35 offset:{k*8*2064}'); e(f'ds_read_b128 v[{68+8*k}:{71+8*k}], v35 offset:{k*8*2064+16}')
    for k in range(4):
        e(f's_waitcnt lgkmcnt({6-2*k})')
        for q in range(4): e(f'v_cvt_pk_bf16_f32 v{96+4*k+q}, v{64+8*k+2*q}, v{65+8*k+2*q}')
        e(f's_add_u32 s58, s55, {k*8*32768}')
        e(f'buffer_store_dwordx4 v[{96+4*k}:{99+4*k}], v36, {S(SWS)}, s58 offen sc1')
    lsk=U('BSK')
    e('s_cmp_ge_u32 s60, 2'); e(f's_cbranch_scc1 {lsk}')
    e('v_lshlrev_b32 v33, 6, v7'); e('v_lshl_add_u32 v33, v3, 4, v33')
    for nt in range(4): e(f'ds_read_b128 v[{40+4*nt}:{43+4*nt}], v33 offset:{LSUM+nt*128}')
    e('s_waitcnt lgkmcnt(0)')
    e('s_lshr_b32 s55, s96, 5'); e('s_lshl_b32 s55, s55, 13'); e('s_and_b32 s58, s96, 31'); e('s_lshl_b32 s58, s58, 3'); e('s_add_u32 s55, s55, s58'); e(f's_add_u32 s55, s55, {STATB}')
    e('v_lshl_add_u32 v34, v7, 2, v3'); e('v_lshlrev_b32 v34, 10, v34')
    e('v_cmp_eq_u32 s[66:67], 0, v4')
    for r in range(4):
        e('v_cmp_eq_u32 vcc, 1, v7'); e('s_nop 1')
        e(f'v_cndmask_b32 v36, v{20+r}, v{24+r}, vcc'); e('v_mul_f32 v36, s61, v36')
        e(f'v_add_f32 v37, v{40+r}, v{44+r}'); e(f'v_add_f32 v38, v{48+r}, v{52+r}'); e('v_add_f32 v37, v37, v38')
        e('s_mov_b64 s[62:63], exec'); e('s_and_b64 exec, exec, s[66:67]')
        e(f'buffer_store_dwordx2 v[36:37], v34, {S(SWS)}, s55 offen offset:{r*256} sc1')
        e('s_nop 1'); e('s_mov_b64 exec, s[62:63]')
    lab(lsk)
    e('s_waitcnt vmcnt(0)'); e('s_barrier')
    l0=w0_begin()
    e('s_mov_b32 s55, 224'); signal('s55'); stamp(7)
    w0_end(l0)
    late_loads()

def p3():
    e('s_lshr_b32 s56, s3, 2'); e('s_and_b32 s57, s3, 3')
    e('s_cmp_ge_u32 s2, 128'); e('s_cbranch_scc1 P3B')
    l0=w0_begin()
    e('s_lshr_b32 s55, s56, 1'); e('s_lshl_b32 s55, s55, 2'); wait('s55',1,20); stamp(8)
    e('v_lshrrev_b32 v5, 5, v0'); e('v_and_b32 v6, 31, v0')
    e('s_mul_i32 s55, s56, 3168'); e(f's_add_u32 s55, s55, {PARTA}')
    e('s_mov_b32 s58, 101376'); e('v_mul_lo_u32 v7, v5, s58')
    e('s_lshl_b32 s58, s57, 7'); e('v_lshl_add_u32 v8, v6, 2, v7'); e('v_add_u32 v8, s58, v8'); e('v_add_u32 v7, 0x200, v7')
    for s in range(6):
        e(f'buffer_load_dword v{96+s}, v8, {S(SWS)}, s55 offen offset:{s*528} sc1')
        e(f'buffer_load_dwordx2 v[{104+2*s}:{105+2*s}], v7, {S(SWS)}, s55 offen offset:{s*528} sc1')
    e('s_waitcnt vmcnt(0)')
    e('v_max_f32 v9, v104, v106')
    for s in range(2,6): e(f'v_max_f32 v9, v9, v{104+2*s}')
    e('v_mov_b32 v10, 0'); e('v_mov_b32 v11, 0')
    for s in range(6):
        e(f'v_sub_f32 v12, v{104+2*s}, v9'); e('v_exp_f32 v12, v12'); e('s_nop 0')
        e(f'v_fmac_f32 v10, v12, v{96+s}'); e(f'v_fmac_f32 v11, v12, v{105+2*s}')
    e('v_rcp_f32 v11, v11'); e('s_nop 0'); e('v_mul_f32 v10, v10, v11')
    e('v_cvt_pk_bf16_f32 v10, v10, v10'); e('v_lshlrev_b32 v10, 16, v10')
    e('v_mul_u32_u24 v12, 144, v5'); e('v_lshl_add_u32 v12, v6, 2, v12'); e('ds_write_b32 v12, v10')
    e('v_mov_b32 v13, 0'); e('v_mul_u32_u24 v12, 144, v5'); e('ds_write_b32 v12, v13 offset:128')
    e('s_waitcnt lgkmcnt(0)')
    w0_end(l0)
    e('s_branch P3OUT')
    lab('P3B')
    l0=w0_begin()
    e('s_mov_b32 s55, 224'); wait('s55',1,64); stamp(8)
    w0_end(l0); e('s_barrier')
    e('s_lshl_b32 s55, s56, 8'); e(f's_add_u32 s55, s55, {STATB}')
    e('v_lshrrev_b32 v7, 5, v2'); e('v_lshlrev_b32 v5, 13, v7'); e('v_and_b32 v7, 31, v2'); e('v_lshl_add_u32 v5, v7, 3, v5')
    e(f'buffer_load_dwordx2 v[160:161], v5, {S(SWS)}, s55 offen sc1')
    e('v_lshrrev_b32 v8, 8, v0'); e('v_and_b32 v9, 255, v0'); e('v_lshlrev_b32 v5, 20, v8'); e('v_lshl_add_u32 v5, v9, 2, v5')
    e('s_lshl_b32 s55, s56, 15'); e(f's_add_u32 s55, s55, {PARTB}')
    for s in range(32):
        e(f'buffer_load_dword v{96+s}, v5, {S(SWS)}, s55 offen offset:{(s&3)*1024} sc1')
        if s&3==3: e('s_add_u32 s55, s55, 4096')
    e('s_waitcnt vmcnt(32)')
    e('v_mov_b32 v162, v160'); rowred('v_max_f32',[162]); e('s_nop 1')
    e('ds_swizzle_b32 v163, v162 offset:0x401F'); e('s_waitcnt lgkmcnt(0)'); e('v_max_f32 v162, v162, v163')
    e('v_sub_f32 v160, v160, v162'); e('v_exp_f32 v160, v160'); e('s_nop 0'); e('v_mul_f32 v161, v160, v161')
    rowred('v_add_f32',[161]); e('s_nop 1')
    e('ds_swizzle_b32 v163, v161 offset:0x401F'); e('s_waitcnt lgkmcnt(0)'); e('v_add_f32 v161, v161, v163')
    e('v_rcp_f32 v161, v161'); e('s_nop 0'); e('v_mul_f32 v160, v160, v161')
    e('v_lshlrev_b32 v7, 2, v2'); e('v_lshl_add_u32 v7, v1, 8, v7'); e('ds_write_b32 v7, v160 offset:36864'); e('s_waitcnt lgkmcnt(0)')
    e('v_lshlrev_b32 v6, 8, v1'); e('v_lshl_add_u32 v6, v8, 7, v6')
    for q in range(8): e(f'ds_read_b128 v[{164+4*q}:{167+4*q}], v6 offset:{36864+q*16}')
    e('v_mov_b32 v10, 0'); e('v_mov_b32 v11, 0')
    e('s_waitcnt vmcnt(0) lgkmcnt(0)')
    for s in range(32):
        e(f'v_lshlrev_b32 v12, 16, v{96+s}'); e(f'v_and_b32 v13, 0xffff0000, v{96+s}')
        e(f'v_fmac_f32 v10, v{164+s}, v12'); e(f'v_fmac_f32 v11, v{164+s}, v13')
    e('v_lshlrev_b32 v5, 11, v8'); e('v_lshl_add_u32 v5, v9, 3, v5')
    e('ds_write_b64 v5, v[10:11] offset:20736')
    e('s_waitcnt lgkmcnt(0)'); e('s_barrier')
    e('v_lshrrev_b32 v5, 2, v0'); e('v_lshlrev_b32 v5, 2, v5'); e('v_and_b32 v7, 3, v0')
    for i in range(4):
        for b in range(2): e(f'ds_read_b32 v{96+2*i+b}, v5 offset:{20736+b*2048+i*512}')
    for k in range(16): e(f'v_mov_b32 v{112+k}, 0')
    e('s_waitcnt lgkmcnt(0)')
    for i in range(4):
        for j in range(4):
            e(f'v_lshlrev_b32 v8, 16, v{40+4*i+j}'); e(f'v_and_b32 v9, 0xffff0000, v{40+4*i+j}')
            for b in range(2):
                e(f'v_fmac_f32 v{112+b*8+2*j}, v{96+2*i+b}, v8'); e(f'v_fmac_f32 v{112+b*8+2*j+1}, v{96+2*i+b}, v9')
    for ror in (4,8):
        e('s_nop 1')
        for k in range(16): e(f'v_add_f32_dpp v{112+k}, v{112+k}, v{112+k} row_ror:{ror}'+DPP)
    e('v_lshrrev_b32 v5, 4, v0'); e('v_lshlrev_b32 v5, 8, v5'); e('v_lshl_add_u32 v5, v7, 6, v5')
    e('v_cmp_gt_u32 vcc, 4, v4'); e('s_and_saveexec_b64 s[62:63], vcc')
    for k in range(4): e(f'ds_write_b128 v5, v[{112+4*k}:{115+4*k}] offset:{24832+16*k}')
    e('s_mov_b64 exec, s[62:63]')
    e('s_waitcnt lgkmcnt(0)'); e('s_barrier')
    l0=w0_begin()
    e('v_lshlrev_b32 v5, 2, v0')
    for k in range(32): e(f'ds_read_b32 v{96+k}, v5 offset:{24832+256*k}')
    e('s_waitcnt lgkmcnt(0)')
    for k in range(1,32): e(f'v_add_f32 v96, v96, v{96+k}')
    e('v_cvt_pk_bf16_f32 v96, v96, v96'); e('v_lshlrev_b32 v96, 16, v96')
    e('v_lshlrev_b32 v5, 5, v3'); e('v_and_b32 v6, 7, v0'); e('v_lshl_add_u32 v5, v6, 2, v5')
    e('v_bfe_u32 v6, v0, 3, 1'); e('v_mul_u32_u24 v6, 144, v6'); e('v_add_u32 v5, v5, v6')
    e('ds_write_b32 v5, v96'); e('v_mov_b32 v97, 0'); e('ds_write_b32 v6, v97 offset:128'); e('s_waitcnt lgkmcnt(0)')
    w0_end(l0)
    lab('P3OUT')
    e('s_barrier')
    e('v_lshlrev_b32 v5, 2, v92')
    e('v_min_u32 v5, 8, v5')
    for i in range(11):
        for b in range(2): e(f'ds_read_b32 v{96+2*i+b}, v5 offset:{b*144+i*12}')
    for k in range(8): e(f'v_mov_b32 v{120+k}, 0')
    e('s_waitcnt vmcnt(0) lgkmcnt(0)')
    for i in range(11):
        for j in range(2):
            e(f'v_lshlrev_b32 v8, 16, v{16+2*i+j}'); e(f'v_and_b32 v9, 0xffff0000, v{16+2*i+j}')
            for b in range(2):
                e(f'v_fmac_f32 v{120+4*b+2*j}, v{96+2*i+b}, v8'); e(f'v_fmac_f32 v{121+4*b+2*j}, v{96+2*i+b}, v9')
    e('v_mul_u32_u24 v5, 4608, v92'); e('v_lshl_add_u32 v5, v93, 4, v5')
    e('ds_write_b128 v5, v[120:123] offset:1024'); e('ds_write_b128 v5, v[124:127] offset:3328')
    e('s_waitcnt lgkmcnt(0)'); e('s_barrier')
    e('v_cmp_gt_u32 vcc, 0x120, v0'); e('s_and_saveexec_b64 s[62:63], vcc'); l2=U('OSK'); e(f's_cbranch_execz {l2}')
    e('v_lshlrev_b32 v5, 4, v0')
    for g in range(3): e(f'ds_read_b128 v[{96+4*g}:{99+4*g}], v5 offset:{1024+4608*g}')
    e('s_waitcnt lgkmcnt(0)')
    for g in range(1,3):
        for k in range(4): e(f'v_add_f32 v{96+k}, v{96+k}, v{96+4*g+k}')
    e('s_mul_i32 s55, s2, 4608'); e(f's_add_u32 s55, s55, {OUTP}')
    e(f'buffer_store_dwordx4 v[96:99], v5, {S(SWS)}, s55 offen sc1')
    lab(l2); e('s_mov_b64 exec, s[62:63]')
    e('s_waitcnt vmcnt(0)'); e('s_barrier')
    l0=w0_begin()
    e('s_and_b32 s55, s2, 3'); e('s_lshl_b32 s55, s55, 2'); e('s_add_u32 s55, s55, 228'); signal('s55'); stamp(9)
    w0_end(l0)
    e('s_cmp_ge_u32 s2, 36'); e('s_cbranch_scc1 ENDS')
    l0=w0_begin()
    e('s_mov_b32 s55, 228'); wait('s55',4,64); stamp(10)
    w0_end(l0)
    e('s_barrier')
    e('s_cmp_ge_u32 s2, 18'); e('s_cselect_b32 s56, 1, 0')
    e('s_mul_i32 s57, s56, 18'); e('s_sub_u32 s57, s2, s57'); e('s_lshl_b32 s57, s57, 6')
    e('v_add_u32 v7, s57, v2')
    e('s_mul_i32 s55, s56, 589824'); e(f's_add_u32 s55, s55, {OUTP}')
    e('s_mov_b32 s58, 73728'); e('v_mul_lo_u32 v8, v1, s58'); e('v_lshl_add_u32 v8, v7, 2, v8')
    for k in range(16):
        e(f'buffer_load_dword v{96+k}, v8, {S(SWS)}, s55 offen sc1'); e('s_add_u32 s55, s55, 4608')
    e('s_waitcnt vmcnt(0)')
    for k in range(1,16): e(f'v_add_f32 v96, v96, v{96+k}')
    e('v_lshlrev_b32 v5, 2, v0'); e('ds_write_b32 v5, v96 offset:32768'); e('s_waitcnt lgkmcnt(0)'); e('s_barrier')
    e('s_cmp_lg_u32 s60, 0'); e('s_cbranch_scc1 END')
    for w in range(8): e(f'ds_read_b32 v{96+w}, v5 offset:{32768+256*w}')
    e('s_waitcnt lgkmcnt(0)')
    for w in range(1,8): e(f'v_add_f32 v96, v96, v{96+w}')
    e('v_cvt_pk_bf16_f32 v96, v96, v96')
    e('v_cmp_le_u32 vcc, 0x240, v7'); e('v_mov_b32 v6, 0x240'); e('s_nop 1'); e('v_cndmask_b32 v6, 0, v6, vcc')
    e('v_add_u32 v6, v6, v7'); e('s_mul_i32 s58, s56, 576'); e('v_add_u32 v6, s58, v6'); e('v_lshlrev_b32 v6, 1, v6')
    e(f'buffer_store_short v96, v6, {S(SOUT)}, 0 offen')

hdr=open(f'cdna_kernels/{NAME}.s.ref').read().split('\n')
hdr=[h for h in hdr if h.startswith(';') and '@launch' not in h and not h.startswith('; Override') and not h.startswith('; grid=ceil')]
L+=hdr
L+=['; @launch grid=(256,1,1) block=(512,1,1) lds=106496','.amdgcn_target "amdgcn-amd-amdhsa--gfx950"','.text']
body()
L+=['.section .rodata,"a"','.p2align 6',f'.amdhsa_kernel {NAME}_kernel','  .amdhsa_next_free_vgpr 256','  .amdhsa_next_free_sgpr 102','  .amdhsa_accum_offset 256',
    '  .amdhsa_group_segment_fixed_size 0','  .amdhsa_kernarg_size 112','  .amdhsa_user_sgpr_count 2','  .amdhsa_user_sgpr_kernarg_segment_ptr 1',
    '  .amdhsa_system_sgpr_workgroup_id_x 1','.end_amdhsa_kernel']
open(OUT,'w').write('\n'.join(L)+'\n')
```

```python
import struct, os
NAME='concat_heads__gqa_block_cached__compressed_kv_cla__decode'
OUT=os.environ.get('OUTF','') or f'cdna_kernels/{NAME}.s'
L=[]
def e(s): L.append('    '+s)
def lab(s): L.append(s+':')
def f32(x): return '0x%08x'%struct.unpack('<I',struct.pack('<f',x))[0]
CS=f32(1.4426950408889634/(128**0.5))
QA=0; QB=16384; QP=32768; PARTA=98304; STATB=368640; PARTB=393216; OUTP=4587520
WSSZ=8*1024*1024
DPP=' row_mask:0xf bank_mask:0xf'
HUGE='0x7fffff00'
SX,SW,SUK,SK,SV,SC,SWS,SDBG,SWO,SUV,SOUT=8,12,16,20,24,28,32,36,40,44,48
uid=[0]
STAMP=os.environ.get('STAMP','')=='1'
def stamp(i):
    if STAMP: e(f's_memrealtime s[{68+2*i}:{69+2*i}]')
def stamp_flush():
    if not STAMP: return
    l=U('SF'); e('s_cmp_lg_u32 s60, 0'); e(f's_cbranch_scc1 {l}')
    e('s_cmp_lg_u32 s2, 5'); e(f's_cbranch_scc1 {l}')
    e('s_waitcnt lgkmcnt(0)'); e('s_mov_b64 exec, 1'); e('v_mov_b32 v5, 0')
    for i in range(12):
        e(f's_sub_u32 s55, s{68+2*i}, s68'); e(f'v_mov_b32 v6, s55'); e(f'buffer_store_dword v6, v5, {S(SDBG)}, 0 offen offset:{4+4*i}')
    e('s_mov_b64 exec, -1')
    lab(l)

def U(p): uid[0]+=1; return f'{p}_{uid[0]}'
def srd(d, lo, size):
    e(f's_mov_b32 s{d}, s{lo}'); e(f's_and_b32 s{d+1}, s{lo+1}, 0xffff'); e(f's_mov_b32 s{d+2}, {size}'); e(f's_mov_b32 s{d+3}, 0x00020000')
def S(d): return f's[{d}:{d+3}]'
def rowred(op, regs):
    for ror in (8,4,2,1):
        e('s_nop 1')
        for r in regs: e(f'{op}_dpp v{r}, v{r}, v{r} row_ror:{ror}'+DPP)
def w0_begin():
    l=U('W0E'); e('s_cmp_lg_u32 s60, 0'); e(f's_cbranch_scc1 {l}'); return l
def w0_end(l): lab(l)
CB=0x780000
def signal(off_sgpr):
    e('s_mov_b64 s[62:63], exec'); e('s_mov_b64 exec, 1')
    e('v_mov_b32 v5, 1'); e(f'v_mov_b32 v6, {off_sgpr}'); e('v_lshlrev_b32 v6, 5, v6'); e(f'v_add_u32 v6, {CB}, v6')
    e(f'buffer_atomic_add v5, v6, {S(SWS)}, 0 offen')
    e('s_mov_b64 exec, s[62:63]')
def wait(off_sgpr, n, target, dbg=False):
    lp=U('POLL'); dn=U('PDONE')
    e('s_mov_b64 s[62:63], exec'); e(f's_mov_b64 exec, {(1<<n)-1}')
    if dbg: e('v_mov_b32 v6, 0')
    else:
        e('v_lshlrev_b32 v6, 2, v2'); e(f'v_add_u32 v6, {off_sgpr}, v6'); e('v_lshlrev_b32 v6, 5, v6'); e(f'v_add_u32 v6, {CB}, v6')
    e('s_mov_b32 s64, 0')
    lab(lp)
    e(f'buffer_load_dword v5, v6, {S(SDBG if dbg else SWS)}, 0 offen sc1')
    e('s_waitcnt vmcnt(0)')
    e(f'v_cmp_le_u32 vcc, {target}, v5')
    e('s_nop 3')
    e('s_cmp_eq_u64 vcc, exec'); e(f's_cbranch_scc1 {dn}')
    e('s_add_u32 s64, s64, 1'); e('s_cmp_gt_u32 s64, 0x20000'); e(f's_cbranch_scc1 {dn}')
    e('s_sleep 2'); e(f's_branch {lp}')
    lab(dn)
    e('s_mov_b64 exec, s[62:63]')
def init_counters():
    e(f's_add_u32 s100, s94, {CB}'); e('s_addc_u32 s101, s95, 0')
    l=U('INI'); e('s_cmp_lg_u32 s2, 0'); e(f's_cbranch_scc1 {l}'); e('s_cmp_lg_u32 s60, 0'); e(f's_cbranch_scc1 {l}')
    e('v_lshlrev_b32 v5, 7, v2'); e(f'v_add_u32 v5, {CB}, v5'); e('v_mov_b32 v6, 0')
    e(f'buffer_store_dword v6, v5, {S(SWS)}, 0 offen sc1'); e('s_waitcnt vmcnt(0)')
    e('s_mov_b64 exec, 1'); e('v_mov_b32 v5, 1'); e('v_mov_b32 v6, 0')
    e(f'buffer_atomic_add v5, v6, {S(SDBG)}, 0 offen'); e('s_mov_b64 exec, -1')
    lab(l)
def wait_init():
    wait('0',1,1,dbg=True)

def body():
    L.append(f'.globl {NAME}_kernel'); L.append('.p2align 8'); L.append(f'.type {NAME}_kernel,@function'); lab(f'{NAME}_kernel')
    e('s_cmp_ge_u32 s2, 256'); e('s_cbranch_scc1 END')
    e('s_load_dwordx16 s[68:83], s[0:1], 0'); e('s_load_dwordx8 s[84:91], s[0:1], 64'); e('s_load_dwordx4 s[92:95], s[0:1], 96')
    e('v_lshrrev_b32 v1, 6, v0'); e('v_and_b32 v2, 63, v0'); e('v_lshrrev_b32 v3, 4, v2'); e('v_and_b32 v4, 15, v2')
    for r in (12,13,14,15): e(f'v_mov_b32 v{r}, {HUGE}')
    e('v_readfirstlane_b32 s60, v1')
    e(f's_mov_b32 s61, {CS}')
    e('s_waitcnt lgkmcnt(0)')
    e('s_cmp_lt_u32 s2, 128')
    e('s_cselect_b64 s[4:5], s[68:69], s[78:79]'); e('s_cselect_b64 s[6:7], s[74:75], s[82:83]'); e('s_cselect_b64 s[52:53], s[76:77], s[88:89]')
    srd(SX,4,2304); srd(SW,6,576*8192); srd(SUK,84,512*8192); srd(SK,70,2*16*4096*256); srd(SV,72,2*16*4096*256)
    srd(SC,80,2*4096*1024); srd(SWS,94,WSSZ); srd(SDBG,92,256); srd(SWO,52,4096*1152); srd(SUV,86,512*8192); srd(SOUT,90,4608)
    init_counters()
    stamp(0)
    e('s_and_b32 s3, s2, 127'); e('s_lshl_b32 s54, s3, 6')
    e('v_lshrrev_b32 v7, 2, v0'); e('v_and_b32 v8, 3, v0')
    e('s_cmp_ge_u32 s2, 128'); e('s_cbranch_scc1 P1L_SKIP')
    e('v_lshlrev_b32 v9, 13, v7'); e('v_lshl_add_u32 v9, v8, 4, v9'); e('v_add_u32 v9, s54, v9')
    e('v_lshlrev_b32 v10, 1, v7')
    e('s_mov_b32 s55, 0')
    for i in range(5):
        e(f'buffer_load_dwordx4 v[{16+4*i}:{19+4*i}], v9, {S(SW)}, s55 offen nt'); e('s_add_u32 s55, s55, 1048576')
    for i in range(5):
        for b in range(2): e(f'buffer_load_ushort v{36+2*i+b}, v10, {S(SX)}, 0 offen offset:{b*1152+i*256}')
    lab('P1L_SKIP')
    e('s_cmp_ge_u32 s2, 192'); e('s_cbranch_scc1 ROLE_B')
    e('s_mul_hi_u32 s96, s2, 715827883'); e('s_mul_i32 s97, s96, 6'); e('s_sub_u32 s97, s2, s97')
    e('s_lshl_b32 s55, s96, 20'); e('s_mul_i32 s58, s97, 172032'); e('s_add_u32 s55, s55, s58')
    e('s_sub_u32 s58, s60, 1'); e('s_mul_i32 s58, s58, 24576'); e('s_add_u32 s55, s55, s58'); e('s_mov_b32 s98, 6')
    e('s_cmp_lg_u32 s60, 0'); e('s_cbranch_scc1 AROLE_OK')
    e('s_lshl_b32 s55, s96, 20'); e('s_add_u32 s55, s55, 1032192')
    e('s_cmp_eq_u32 s97, 0'); e('s_cselect_b32 s98, 4, 0')
    lab('AROLE_OK')
    e('v_lshlrev_b32 v13, 8, v4'); e('v_lshl_add_u32 v13, v3, 4, v13'); e('v_add_u32 v13, s55, v13')
    e('v_lshlrev_b32 v12, 4, v2'); e('v_add_u32 v12, s55, v12')
    e('s_branch PF_DONE')
    lab('ROLE_B')
    e('s_sub_u32 s96, s2, 192')
    e('s_lshl_b32 s55, s96, 17')
    e('s_sub_u32 s58, s60, 1'); e('s_max_i32 s58, s58, 0'); e('s_mul_i32 s58, s58, 9216'); e('s_add_u32 s55, s55, s58')
    e('v_lshlrev_b32 v12, 4, v2'); e('v_add_u32 v12, s55, v12')
    lab('PF_DONE')
    e('s_cmp_ge_u32 s2, 128'); e('s_cbranch_scc1 P1_DONE')
    for k in range(16): e(f'v_mov_b32 v{46+k}, 0')
    e('s_waitcnt vmcnt(0)')
    lab('P1GO'); stamp(1)
    for i in range(10): e(f'v_lshlrev_b32 v{36+i}, 16, v{36+i}')
    for i in range(5):
        for j in range(4):
            e(f'v_lshlrev_b32 v62, 16, v{16+4*i+j}'); e(f'v_and_b32 v63, 0xffff0000, v{16+4*i+j}')
            for b in range(2):
                e(f'v_fmac_f32 v{46+b*8+2*j}, v{36+2*i+b}, v62'); e(f'v_fmac_f32 v{46+b*8+2*j+1}, v{36+2*i+b}, v63')
    for ror in (4,8):
        e('s_nop 1')
        for k in range(16): e(f'v_add_f32_dpp v{46+k}, v{46+k}, v{46+k} row_ror:{ror}'+DPP)
    e('v_lshrrev_b32 v5, 4, v0'); e('v_lshlrev_b32 v5, 8, v5'); e('v_lshl_add_u32 v5, v8, 6, v5')
    e('v_cmp_gt_u32 vcc, 4, v4'); e('s_and_saveexec_b64 s[62:63], vcc')
    for k in range(4): e(f'ds_write_b128 v5, v[{46+4*k}:{49+4*k}] offset:{16*k}')
    e('s_mov_b64 exec, s[62:63]')
    e('s_waitcnt lgkmcnt(0)'); e('s_barrier')
    l0=w0_begin()
    e('v_lshlrev_b32 v5, 2, v0')
    for k in range(32): e(f'ds_read_b32 v{16+k}, v5 offset:{256*k}')
    e('s_waitcnt lgkmcnt(0)')
    for k in range(1,32): e(f'v_add_f32 v16, v16, v{16+k}')
    e('v_cvt_pk_bf16_f32 v16, v16, v16')
    e('v_lshlrev_b32 v5, 4, v3'); e('v_and_b32 v6, 7, v0'); e('v_lshl_add_u32 v5, v6, 1, v5')
    e('v_bfe_u32 v6, v0, 3, 1'); e('v_lshl_add_u32 v5, v6, 13, v5')
    e('s_lshr_b32 s55, s2, 7'); e('s_lshl_b32 s55, s55, 14'); e('s_add_u32 s55, s55, s54')
    e(f'buffer_store_short v16, v5, {S(SWS)}, s55 offen sc1')
    e('s_waitcnt vmcnt(0)')
    e('s_lshr_b32 s55, s2, 3'); e('s_lshl_b32 s55, s55, 2')
    e('s_sub_u32 s58, s2, 128'); e('s_lshr_b32 s58, s58, 2'); e('s_lshl_b32 s58, s58, 2'); e('s_add_u32 s58, s58, 64')
    e('s_cmp_lt_u32 s2, 128'); e('s_cselect_b32 s55, s55, s58')
    e('s_mov_b32 s59, s55'); wait_init(); e('s_mov_b32 s55, s59')
    signal('s55'); stamp(2)
    w0_end(l0)
    lab('P1_DONE')
    e('s_cmp_ge_u32 s2, 192'); e('s_cbranch_scc1 ATT_B')
    attA()
    e('s_branch P3')
    lab('ATT_B')
    attB()
    lab('P3')
    p3()
    stamp(11)
    lab('ENDS'); stamp_flush()
    lab('END'); e('s_endpgm')

OOB='0x7fff0000'
def kissue():
    for t in range(6):
        e(f's_cmp_gt_u32 s98, {t}'); e(f's_mov_b32 s55, {t*4096}'); e(f's_cselect_b32 s55, s55, {OOB}')
        for ks in range(4):
            r=64+16*t+4*ks
            e(f'buffer_load_dwordx4 v[{r}:{r+3}], v13, {S(SK)}, s55 offen offset:{ks*64} nt')
def vissue():
    for i in range(24):
        if i%4==0:
            e(f's_cmp_gt_u32 s98, {i//4}'); e(f's_mov_b32 s55, {(i//4)*4096}'); e(f's_cselect_b32 s55, s55, {OOB}')
        e(f'buffer_load_dwordx4 v[{160+4*i}:{163+4*i}], v12, {S(SV)}, s55 offen offset:{(i%4)*1024} nt')
def cissue():
    for p in range(2):
        for i in range(10):
            if i%4==0 or i==9: e(f's_mov_b32 s55, {p*65536+(i//4)*4096}')
            if i==9: e('s_cmp_eq_u32 s60, 7'); e(f's_cselect_b32 s55, s55, {OOB}')
            r=64+40*p+4*i
            e(f'buffer_load_dwordx4 v[{r}:{r+3}], v12, {S(SC)}, s55 offen offset:{(i%4)*1024} nt')

def late_loads():
    e('s_mov_b32 s55, 29826162'); e('v_mul_hi_u32 v92, v0, s55')
    e('v_mul_u32_u24 v93, 144, v92'); e('v_sub_u32 v93, v0, v93')
    e('v_mul_u32_u24 v5, 1152, v92'); e('v_lshl_add_u32 v5, v93, 3, v5')
    e('v_cmp_gt_u32 vcc, 0x1b0, v0'); e(f'v_mov_b32 v6, {HUGE}'); e('s_nop 1'); e('v_cndmask_b32 v5, v6, v5, vcc')
    e('s_mul_i32 s55, s3, 36864')
    for i in range(11):
        e(f'buffer_load_dwordx2 v[{16+2*i}:{17+2*i}], v5, {S(SWO)}, s55 offen nt'); e('s_add_u32 s55, s55, 3456')
    e('v_lshrrev_b32 v5, 2, v0'); e('v_lshlrev_b32 v5, 13, v5'); e('v_and_b32 v6, 3, v0'); e('v_lshl_add_u32 v5, v6, 4, v5')
    e('s_cmp_lt_u32 s2, 128'); e(f's_cselect_b32 s55, {HUGE}, 0'); e('v_add_u32 v5, s55, v5')
    e('s_lshl_b32 s55, s3, 6')
    for i in range(4):
        e(f'buffer_load_dwordx4 v[{40+4*i}:{43+4*i}], v5, {S(SUV)}, s55 offen nt'); e('s_add_u32 s55, s55, 1048576')

def attA():
    e('s_cmp_eq_u32 s60, 0'); e('s_cbranch_scc1 AK_SKIP')
    kissue(); vissue()
    lab('AK_SKIP')
    l0=w0_begin()
    wait_init()
    e('s_and_b32 s55, s96, 15'); e('s_lshl_b32 s55, s55, 2')
    wait('s55',1,8); stamp(5)
    kissue(); vissue()
    w0_end(l0); e('s_barrier')
    e('v_lshlrev_b32 v5, 8, v4'); e('v_lshl_add_u32 v5, v3, 4, v5'); e('s_lshl_b32 s55, s96, 9')
    e('v_cmp_gt_u32 vcc, 2, v4'); e(f'v_mov_b32 v6, {HUGE}'); e('s_nop 1'); e('v_cndmask_b32 v5, v6, v5, vcc')
    for ks in range(4): e(f'buffer_load_dwordx4 v[{16+4*ks}:{19+4*ks}], v5, {S(SWS)}, s55 offen offset:{ks*64} sc1')
    e('s_waitcnt vmcnt(0)')
    for t in range(6):
        for ks in range(4):
            r=64+16*t+4*ks
            c='0' if ks==0 else f'v[{32+4*t}:{35+4*t}]'
            e(f'v_mfma_f32_16x16x32_bf16 v[{32+4*t}:{35+4*t}], v[{16+4*ks}:{19+4*ks}], v[{r}:{r+3}], {c}')
    e('s_nop 7'); e('s_nop 3'); stamp(6)
    for t in range(6):
        e(f's_cmp_gt_u32 s98, {t}'); e('s_cselect_b32 s55, 0, 0xff800000')
        for h in range(2): e(f'v_add_f32 v{32+4*t+h}, s55, v{32+4*t+h}')
    for h in range(2):
        e(f'v_max3_f32 v{8+h}, v{32+h}, v{36+h}, v{40+h}'); e(f'v_max3_f32 v{8+h}, v{8+h}, v{44+h}, v{48+h}'); e(f'v_max_f32 v{8+h}, v{8+h}, v{52+h}')
        e(f'v_max_f32 v{8+h}, 0xf149f2ca, v{8+h}')
    rowred('v_max_f32',[8,9])
    e('s_nop 1')
    for h in range(2):
        for t in range(6):
            e(f'v_sub_f32 v{32+4*t+h}, v{32+4*t+h}, v{8+h}'); e(f'v_mul_f32 v{32+4*t+h}, s61, v{32+4*t+h}')
    for h in range(2):
        for t in range(6): e(f'v_exp_f32 v{32+4*t+h}, v{32+4*t+h}')
    e('s_nop 0')
    for h in range(2):
        e(f'v_add_f32 v{10+h}, v{32+h}, v{36+h}'); e(f'v_add_f32 v7, v{40+h}, v{44+h}'); e(f'v_add_f32 v{10+h}, v{10+h}, v7'); e(f'v_add_f32 v7, v{48+h}, v{52+h}'); e(f'v_add_f32 v{10+h}, v{10+h}, v7')
    rowred('v_add_f32',[10,11])
    e('v_mul_u32_u24 v5, 768, v1'); e('v_lshl_add_u32 v5, v2, 3, v5')
    e('v_cmp_gt_u32 vcc, 16, v2'); e('s_and_saveexec_b64 s[62:63], vcc')
    for t in range(6): e(f'ds_write_b64 v5, v[{32+4*t}:{33+4*t}] offset:{10240+t*128}')
    e('v_lshlrev_b32 v6, 4, v1'); e('ds_write_b128 v6, v[8:11] offset:16384')
    e('s_mov_b64 exec, s[62:63]')
    for k in range(16): e(f'v_mov_b32 v{56+k}, 0')
    e('s_waitcnt lgkmcnt(0)')
    e('v_mul_u32_u24 v5, 768, v1'); e('v_lshl_add_u32 v5, v3, 3, v5')
    for half in range(2):
        for ii in range(12): e(f'ds_read_b64 v[{96+2*ii}:{97+2*ii}], v5 offset:{10240+(half*12+ii)*32}')
        for ii in range(12):
            i=half*12+ii; pr=96+2*ii; vr=160+4*i
            e(f's_waitcnt lgkmcnt({11-ii})')
            for j in range(4):
                e(f'v_lshlrev_b32 v6, 16, v{vr+j}'); e(f'v_and_b32 v7, 0xffff0000, v{vr+j}')
                e(f'v_pk_fma_f32 v[{56+2*j}:{57+2*j}], v[6:7], v[{pr}:{pr+1}], v[{56+2*j}:{57+2*j}] op_sel:[0,0,0] op_sel_hi:[1,0,1]')
                e(f'v_pk_fma_f32 v[{64+2*j}:{65+2*j}], v[6:7], v[{pr}:{pr+1}], v[{64+2*j}:{65+2*j}] op_sel:[0,1,0] op_sel_hi:[1,1,1]')
    late_loads()
    e('v_lshl_add_u32 v5, v1, 2, v3'); e('v_lshlrev_b32 v5, 10, v5'); e('v_lshl_add_u32 v5, v4, 5, v5')
    for h in range(2):
        e(f'ds_write_b128 v5, v[{56+8*h}:{59+8*h}] offset:{17408+512*h}'); e(f'ds_write_b128 v5, v[{60+8*h}:{63+8*h}] offset:{17408+512*h+16}')
    e('s_waitcnt lgkmcnt(0)'); e('s_barrier')
    lsk=U('ASK')
    e('s_cmp_ge_u32 s60, 4'); e(f's_cbranch_scc1 {lsk}')
    e('v_lshrrev_b32 v5, 7, v0'); e('v_and_b32 v6, 127, v0'); e('v_lshlrev_b32 v7, 2, v5')
    for w in range(8):
        e(f'ds_read_b32 v{96+w}, v7 offset:{16384+16*w}'); e(f'ds_read_b32 v{104+w}, v7 offset:{16384+16*w+8}')
    e('v_lshlrev_b32 v8, 9, v5'); e('v_lshl_add_u32 v8, v6, 2, v8')
    for wg in range(32): e(f'ds_read_b32 v{112+wg}, v8 offset:{17408+1024*wg}')
    e('s_waitcnt lgkmcnt(0)')
    e('v_max_f32 v9, v96, v97')
    for w in range(2,8): e(f'v_max_f32 v9, v9, v{96+w}')
    for w in range(8):
        e(f'v_sub_f32 v{96+w}, v{96+w}, v9'); e(f'v_mul_f32 v{96+w}, s61, v{96+w}'); e(f'v_exp_f32 v{96+w}, v{96+w}')
    e('v_mov_b32 v10, 0'); e('v_mov_b32 v11, 0')
    for w in range(8):
        e(f'v_add_f32 v12, v{112+4*w}, v{113+4*w}'); e(f'v_add_f32 v13, v{114+4*w}, v{115+4*w}'); e('v_add_f32 v12, v12, v13')
        e(f'v_fmac_f32 v10, v{96+w}, v12'); e(f'v_fmac_f32 v11, v{96+w}, v{104+w}')
    e('v_mul_f32 v9, s61, v9')
    e('s_mul_i32 s55, s96, 12'); e('s_add_u32 s55, s55, s97'); e('s_mul_i32 s55, s55, 528'); e(f's_add_u32 s55, s55, {PARTA}')
    e('v_mul_u32_u24 v12, 3168, v5'); e('v_lshl_add_u32 v12, v6, 2, v12')
    e(f'buffer_store_dword v10, v12, {S(SWS)}, s55 offen sc1')
    e('v_cmp_eq_u32 vcc, 0, v6'); e('s_and_saveexec_b64 s[62:63], vcc'); l2=U('ASK2'); e(f's_cbranch_execz {l2}')
    e('v_mov_b32 v10, v9')
    e(f'buffer_store_dwordx2 v[10:11], v12, {S(SWS)}, s55 offen offset:512 sc1')
    lab(l2); e('s_mov_b64 exec, s[62:63]')
    lab(lsk)
    e('s_waitcnt vmcnt(0)'); e('s_barrier')
    l0=w0_begin()
    e('s_and_b32 s55, s96, 15'); e('s_lshl_b32 s55, s55, 2'); signal('s55'); stamp(7)
    w0_end(l0)

PBUF=0; SMAX=4608; LSUM=5120; QL=5632; CT=38912
def bprep():
    e('s_lshr_b32 s56, s96, 1'); e('s_and_b32 s57, s96, 1')
    e('v_lshrrev_b32 v7, 4, v0')
    e('v_lshlrev_b32 v9, 13, v7'); e('v_lshl_add_u32 v9, v4, 4, v9')
    e('s_lshl_b32 s55, s56, 8')
    for i in range(18):
        e(f'buffer_load_dwordx4 v[{64+4*i}:{67+4*i}], v9, {S(SW)}, s55 offen nt'); e('s_add_u32 s55, s55, 262144')
    e('v_lshlrev_b32 v10, 1, v7')
    for i in range(18):
        for b in range(2): e(f'buffer_load_ushort v{136+2*i+b}, v10, {S(SX)}, 0 offen offset:{b*1152+i*64}')
    e('s_lshl_b32 s55, s57, 21'); e('s_lshl_b32 s58, s56, 8'); e('s_add_u32 s55, s55, s58')
    for i in range(8):
        e(f'buffer_load_dwordx4 v[{172+4*i}:{175+4*i}], v9, {S(SUK)}, s55 offen nt'); e('s_add_u32 s55, s55, 262144')
    for k in range(16): e(f'v_mov_b32 v{16+k}, 0')
    e('s_waitcnt vmcnt(8)')
    for i in range(36): e(f'v_lshlrev_b32 v{136+i}, 16, v{136+i}')
    for i in range(18):
        for j in range(4):
            e(f'v_lshlrev_b32 v32, 16, v{64+4*i+j}'); e(f'v_and_b32 v33, 0xffff0000, v{64+4*i+j}')
            for b in range(2):
                e(f'v_fmac_f32 v{16+b*8+2*j}, v{136+2*i+b}, v32'); e(f'v_fmac_f32 v{16+b*8+2*j+1}, v{136+2*i+b}, v33')
    e('v_lshlrev_b32 v5, 10, v7'); e('v_lshl_add_u32 v5, v4, 5, v5')
    for b in range(2):
        e(f'ds_write_b128 v5, v[{16+8*b}:{19+8*b}] offset:{b*512}'); e(f'ds_write_b128 v5, v[{20+8*b}:{23+8*b}] offset:{b*512+16}')
    e('s_waitcnt lgkmcnt(0)'); e('s_barrier')
    lk=U('BPK'); e('s_cmp_ge_u32 s60, 4'); e(f's_cbranch_scc1 {lk}')
    e('v_lshlrev_b32 v5, 2, v0')
    for k in range(32): e(f'ds_read_b32 v{64+k}, v5 offset:{1024*k}')
    e('s_waitcnt lgkmcnt(0)')
    for k in range(1,32): e(f'v_add_f32 v64, v64, v{64+k}')
    e('v_cvt_pk_bf16_f32 v64, v64, v64'); e('v_lshlrev_b32 v5, 1, v0'); e('ds_write_b16 v5, v64 offset:32768'); e('s_waitcnt lgkmcnt(0)')
    lab(lk); e('s_barrier')
    e('v_lshlrev_b32 v5, 4, v4')
    e('ds_read_b128 v[32:35], v5 offset:32768'); e('ds_read_b128 v[36:39], v5 offset:33024')
    for k in range(16): e(f'v_mov_b32 v{16+k}, 0')
    e('s_waitcnt vmcnt(0) lgkmcnt(0)')
    for k in range(4):
        for i in range(8):
            for b in range(2): e(f'v_dot2_f32_bf16 v{16+2*i+b}, v{172+4*i+k}, v{32+4*b+k}, v{16+2*i+b}')
    e('s_nop 3')
    rowred('v_add_f32',list(range(16,32)))
    e('s_nop 1')
    for i in range(1,8):
        e(f'v_cmp_eq_u32 vcc, {i}, v4'); e('s_nop 1')
        for b in range(2): e(f'v_cndmask_b32 v{16+b}, v{16+b}, v{16+2*i+b}, vcc')
    e('v_cvt_pk_bf16_f32 v16, v16, v16'); e('v_cvt_pk_bf16_f32 v17, v17, v17')
    e('s_lshl_b32 s55, s56, 10'); e('s_lshl_b32 s58, s57, 9'); e('s_add_u32 s55, s55, s58'); e(f's_add_u32 s55, s55, {QP}'); e('s_add_u32 s58, s55, 32768')
    e('v_lshl_add_u32 v5, v4, 5, v7'); e('v_lshlrev_b32 v5, 1, v5')
    e('v_cmp_gt_u32 vcc, 8, v4'); e('s_and_saveexec_b64 s[62:63], vcc')
    e(f'buffer_store_short v16, v5, {S(SWS)}, s55 offen sc1'); e(f'buffer_store_short v17, v5, {S(SWS)}, s58 offen sc1')
    e('s_mov_b64 exec, s[62:63]')
    e('s_waitcnt vmcnt(0)'); e('s_barrier')
    l0=w0_begin()
    wait_init()
    e('s_and_b32 s55, s2, 7'); e('s_lshl_b32 s55, s55, 2'); e('s_add_u32 s55, s55, 192')
    signal('s55'); stamp(4)
    w0_end(l0)

def attB():
    bprep()
    e('s_cmp_eq_u32 s60, 0'); e('s_cbranch_scc1 BC_SKIP')
    cissue()
    lab('BC_SKIP')
    l0=w0_begin()
    e('s_mov_b32 s55, 192'); wait('s55',8,8); stamp(5)
    e('s_lshr_b32 s55, s96, 5'); e('s_lshl_b32 s55, s55, 15'); e(f's_add_u32 s55, s55, {QP}')
    e('v_lshlrev_b32 v5, 4, v2')
    for h in range(32):
        e(f'buffer_load_dwordx4 v[{64+4*h}:{67+4*h}], v5, {S(SWS)}, s55 offen offset:{(h%4)*1024} sc1')
        if h%4==3: e('s_add_u32 s55, s55, 4096')
    e(f'v_add_u32 v6, {QL}, v5')
    for h in range(32):
        e(f's_waitcnt vmcnt({31-h})'); e(f'ds_write_b128 v6, v[{64+4*h}:{67+4*h}] offset:{h*1040}')
    w0_end(l0)
    e('v_subrev_u32 v6, 1, v1'); e('v_max_i32 v6, 0, v6'); e('v_mul_u32_u24 v6, 9360, v6'); e('v_lshl_add_u32 v6, v2, 4, v6'); e(f'v_add_u32 v6, {CT}, v6')
    e('v_and_b32 v7, 1, v1'); e('v_lshrrev_b32 v8, 1, v1')
    e('v_lshl_add_u32 v9, v7, 4, v4'); e('v_mul_u32_u24 v9, 1040, v9'); e('v_lshl_add_u32 v9, v3, 4, v9'); e(f'v_add_u32 v9, {QL}, v9')
    e('v_lshl_add_u32 v10, v8, 4, v4'); e('v_mul_u32_u24 v10, 1040, v10'); e('v_lshl_add_u32 v10, v3, 4, v10'); e(f'v_add_u32 v10, {CT}, v10')
    e('v_lshlrev_b32 v11, 7, v8'); e('v_lshl_add_u32 v11, v7, 6, v11'); e('v_lshl_add_u32 v11, v3, 4, v11')
    e('v_lshlrev_b32 v16, 4, v3')
    e('v_lshl_add_u32 v17, v7, 2, v3'); e('v_mul_u32_u24 v17, 576, v17'); e('v_lshl_add_u32 v18, v8, 4, v4'); e('v_lshl_add_u32 v17, v18, 1, v17')
    e('v_mul_u32_u24 v18, 144, v4'); e('v_lshl_add_u32 v18, v3, 4, v18')
    e('v_lshrrev_b32 v19, 2, v4'); e('v_lshl_add_u32 v19, v3, 3, v19'); e('v_mul_u32_u24 v19, 1040, v19')
    e('v_and_b32 v20, 3, v4'); e('v_lshl_add_u32 v19, v20, 3, v19'); e('v_lshl_add_u32 v19, v1, 7, v19'); e(f'v_add_u32 v19, {CT}, v19')
    for k in range(8): e(f'v_mov_b32 v{20+k}, 0xff800000')
    for k in range(4): e(f'v_mov_b32 v{28+k}, 0')
    for k in range(32): e(f'v_mov_b32 v{224+k}, 0')
    for p in range(2):
        e(f's_waitcnt vmcnt({10-10*p})')
        e('s_barrier')
        lw=U('CW'); e('s_cmp_eq_u32 s60, 0'); e(f's_cbranch_scc1 {lw}')
        for i in range(9): e(f'ds_write_b128 v6, v[{64+40*p+4*i}:{67+40*p+4*i}] offset:{i*1040}')
        e('s_cmp_lg_u32 s60, 7'); e(f's_cbranch_scc1 {lw}')
        e(f'ds_write_b128 v6, v[{64+40*p+36}:{67+40*p+36}] offset:{9*1040}')
        lab(lw)
        e('s_waitcnt lgkmcnt(0)'); e('s_barrier')
        if p==0: stamp(6)
        if p==1: stamp(10)
        for half in range(4):
            for k in range(4):
                ks=half*4+k
                e(f'ds_read_b128 v[{32+8*k}:{35+8*k}], v9 offset:{ks*64}'); e(f'ds_read_b128 v[{36+8*k}:{39+8*k}], v10 offset:{ks*64}')
            for k in range(4):
                ks=half*4+k
                e(f's_waitcnt lgkmcnt({6-2*k})')
                c='0' if ks==0 else 'v[12:15]'
                e(f'v_mfma_f32_16x16x32_bf16 v[12:15], v[{32+8*k}:{35+8*k}], v[{36+8*k}:{39+8*k}], {c}')
            e('s_nop 3')
        e('s_nop 7'); e('s_nop 3')
        for r in range(4): e(f'v_mov_b32 v{32+r}, v{12+r}')
        rowred('v_max_f32',[32,33,34,35])
        e('s_nop 1')
        e(f'ds_write_b128 v11, v[32:35] offset:{SMAX}')
        e('s_waitcnt lgkmcnt(0)'); e('s_barrier')
        for mt in range(2):
            for nt in range(4): e(f'ds_read_b128 v[{32+16*mt+4*nt}:{35+16*mt+4*nt}], v16 offset:{SMAX+nt*128+mt*64}')
        e('s_waitcnt lgkmcnt(0)')
        for mt in range(2):
            for r in range(4):
                b0=32+16*mt+r
                e(f'v_max_f32 v{b0}, v{b0}, v{b0+4}'); e(f'v_max3_f32 v{b0}, v{b0}, v{b0+8}, v{b0+12}')
                e(f'v_max_f32 v{b0}, v{b0}, v{20+4*mt+r}')
                e(f'v_sub_f32 v{b0+4}, v{20+4*mt+r}, v{b0}'); e(f'v_mul_f32 v{b0+4}, s61, v{b0+4}'); e(f'v_exp_f32 v{b0+4}, v{b0+4}')
                e(f'v_mov_b32 v{20+4*mt+r}, v{b0}')
        e('v_cmp_eq_u32 vcc, 1, v7'); e('s_nop 1')
        for r in range(4):
            e(f'v_cndmask_b32 v{40+r}, v{20+r}, v{24+r}, vcc'); e(f'v_cndmask_b32 v{44+r}, v{36+r}, v{52+r}, vcc')
        for r in range(4):
            e(f'v_sub_f32 v{12+r}, v{12+r}, v{40+r}'); e(f'v_mul_f32 v{12+r}, s61, v{12+r}'); e(f'v_exp_f32 v{12+r}, v{12+r}')
        e('s_nop 0')
        for r in range(4):
            e(f'v_fma_f32 v{28+r}, v{28+r}, v{44+r}, v{12+r}'); e(f'v_cvt_pk_bf16_f32 v{40+r}, v{12+r}, v{12+r}')
        for r in range(4): e(f'ds_write_b16 v17, v{40+r} offset:{PBUF+144*r}')
        for mt in range(2):
            for n in range(4):
                for r in range(4): e(f'v_mul_f32 v{224+(mt*4+n)*4+r}, v{36+16*mt+r}, v{224+(mt*4+n)*4+r}')
        e('s_waitcnt lgkmcnt(0)'); e('s_barrier')
        for mt in range(2):
            for ks in range(2): e(f'ds_read_b128 v[{32+(mt*2+ks)*4}:{35+(mt*2+ks)*4}], v18 offset:{PBUF+mt*2304+ks*64}')
        for grp in range(2):
            for nn in range(2):
                n=grp*2+nn
                for ks in range(2):
                    r=48+nn*8+ks*4
                    e(f'ds_read_b64_tr_b16 v[{r}:{r+1}], v19 offset:{ks*32*1040+n*32}')
                    e(f'ds_read_b64_tr_b16 v[{r+2}:{r+3}], v19 offset:{ks*32*1040+4*1040+n*32}')
            for nn in range(2):
                n=grp*2+nn
                e(f's_waitcnt lgkmcnt({4-4*nn})')
                for ks in range(2):
                    for mt in range(2):
                        a_=224+(mt*4+n)*4
                        e(f'v_mfma_f32_16x16x32_bf16 v[{a_}:{a_+3}], v[{32+(mt*2+ks)*4}:{35+(mt*2+ks)*4}], v[{48+nn*8+ks*4}:{51+nn*8+ks*4}], v[{a_}:{a_+3}]')
            e('s_nop 3')
        e('s_nop 7'); e('s_nop 3')
    stamp(11)
    rowred('v_add_f32',[28,29,30,31])
    e('s_nop 1')
    e(f'ds_write_b128 v11, v[28:31] offset:{LSUM}')
    e('s_lshr_b32 s55, s96, 5'); e('s_lshl_b32 s55, s55, 20'); e('s_and_b32 s58, s96, 31'); e('s_lshl_b32 s58, s58, 10'); e('s_add_u32 s55, s55, s58'); e(f's_add_u32 s55, s55, {PARTB}')
    e('s_barrier')
    e('v_mul_u32_u24 v32, 8256, v3'); e('v_lshl_add_u32 v32, v1, 8, v32'); e('v_lshl_add_u32 v32, v4, 2, v32'); e(f'v_add_u32 v32, {CT}, v32')
    for mt in range(2):
        for r in range(4):
            for n in range(4): e(f'ds_write_b32 v32, v{224+(mt*4+n)*4+r} offset:{(mt*16+r)*2064+n*64}')
    e('s_waitcnt lgkmcnt(0)'); e('s_barrier')
    e('v_mul_u32_u24 v35, 2064, v1'); e('v_lshl_add_u32 v35, v2, 5, v35'); e(f'v_add_u32 v35, {CT}, v35')
    e('v_lshlrev_b32 v36, 15, v1'); e('v_lshl_add_u32 v36, v2, 4, v36')
    for k in range(4):
        e(f'ds_read_b128 v[{64+8*k}:{67+8*k}], v35 offset:{k*8*2064}'); e(f'ds_read_b128 v[{68+8*k}:{71+8*k}], v35 offset:{k*8*2064+16}')
    for k in range(4):
        e(f's_waitcnt lgkmcnt({6-2*k})')
        for q in range(4): e(f'v_cvt_pk_bf16_f32 v{96+4*k+q}, v{64+8*k+2*q}, v{65+8*k+2*q}')
        e(f's_add_u32 s58, s55, {k*8*32768}')
        e(f'buffer_store_dwordx4 v[{96+4*k}:{99+4*k}], v36, {S(SWS)}, s58 offen sc1')
    lsk=U('BSK')
    e('s_cmp_ge_u32 s60, 2'); e(f's_cbranch_scc1 {lsk}')
    e('v_lshlrev_b32 v33, 6, v7'); e('v_lshl_add_u32 v33, v3, 4, v33')
    for nt in range(4): e(f'ds_read_b128 v[{40+4*nt}:{43+4*nt}], v33 offset:{LSUM+nt*128}')
    e('s_waitcnt lgkmcnt(0)')
    e('s_lshr_b32 s55, s96, 5'); e('s_lshl_b32 s55, s55, 13'); e('s_and_b32 s58, s96, 31'); e('s_lshl_b32 s58, s58, 3'); e('s_add_u32 s55, s55, s58'); e(f's_add_u32 s55, s55, {STATB}')
    e('v_lshl_add_u32 v34, v7, 2, v3'); e('v_lshlrev_b32 v34, 10, v34')
    e('v_cmp_eq_u32 s[66:67], 0, v4')
    for r in range(4):
        e('v_cmp_eq_u32 vcc, 1, v7'); e('s_nop 1')
        e(f'v_cndmask_b32 v36, v{20+r}, v{24+r}, vcc'); e('v_mul_f32 v36, s61, v36')
        e(f'v_add_f32 v37, v{40+r}, v{44+r}'); e(f'v_add_f32 v38, v{48+r}, v{52+r}'); e('v_add_f32 v37, v37, v38')
        e('s_mov_b64 s[62:63], exec'); e('s_and_b64 exec, exec, s[66:67]')
        e(f'buffer_store_dwordx2 v[36:37], v34, {S(SWS)}, s55 offen offset:{r*256} sc1')
        e('s_nop 1'); e('s_mov_b64 exec, s[62:63]')
    lab(lsk)
    e('s_waitcnt vmcnt(0)'); e('s_barrier')
    l0=w0_begin()
    e('s_mov_b32 s55, 224'); signal('s55'); stamp(7)
    w0_end(l0)
    late_loads()

def p3():
    e('s_lshr_b32 s56, s3, 2'); e('s_and_b32 s57, s3, 3')
    e('s_cmp_ge_u32 s2, 128'); e('s_cbranch_scc1 P3B')
    l0=w0_begin()
    e('s_lshr_b32 s55, s56, 1'); e('s_lshl_b32 s55, s55, 2'); wait('s55',1,20); stamp(8)
    e('v_lshrrev_b32 v5, 5, v0'); e('v_and_b32 v6, 31, v0')
    e('s_mul_i32 s55, s56, 3168'); e(f's_add_u32 s55, s55, {PARTA}')
    e('s_mov_b32 s58, 101376'); e('v_mul_lo_u32 v7, v5, s58')
    e('s_lshl_b32 s58, s57, 7'); e('v_lshl_add_u32 v8, v6, 2, v7'); e('v_add_u32 v8, s58, v8'); e('v_add_u32 v7, 0x200, v7')
    for s in range(6):
        e(f'buffer_load_dword v{96+s}, v8, {S(SWS)}, s55 offen offset:{s*528} sc1')
        e(f'buffer_load_dwordx2 v[{104+2*s}:{105+2*s}], v7, {S(SWS)}, s55 offen offset:{s*528} sc1')
    e('s_waitcnt vmcnt(0)')
    e('v_max_f32 v9, v104, v106')
    for s in range(2,6): e(f'v_max_f32 v9, v9, v{104+2*s}')
    e('v_mov_b32 v10, 0'); e('v_mov_b32 v11, 0')
    for s in range(6):
        e(f'v_sub_f32 v12, v{104+2*s}, v9'); e('v_exp_f32 v12, v12'); e('s_nop 0')
        e(f'v_fmac_f32 v10, v12, v{96+s}'); e(f'v_fmac_f32 v11, v12, v{105+2*s}')
    e('v_rcp_f32 v11, v11'); e('s_nop 0'); e('v_mul_f32 v10, v10, v11')
    e('v_cvt_pk_bf16_f32 v10, v10, v10'); e('v_lshlrev_b32 v10, 16, v10')
    e('v_mul_u32_u24 v12, 144, v5'); e('v_lshl_add_u32 v12, v6, 2, v12'); e('ds_write_b32 v12, v10')
    e('v_mov_b32 v13, 0'); e('v_mul_u32_u24 v12, 144, v5'); e('ds_write_b32 v12, v13 offset:128')
    e('s_waitcnt lgkmcnt(0)')
    w0_end(l0)
    e('s_branch P3OUT')
    lab('P3B')
    l0=w0_begin()
    e('s_mov_b32 s55, 224'); wait('s55',1,64); stamp(8)
    w0_end(l0); e('s_barrier')
    e('s_lshl_b32 s55, s56, 8'); e(f's_add_u32 s55, s55, {STATB}')
    e('v_lshrrev_b32 v7, 5, v2'); e('v_lshlrev_b32 v5, 13, v7'); e('v_and_b32 v7, 31, v2'); e('v_lshl_add_u32 v5, v7, 3, v5')
    e(f'buffer_load_dwordx2 v[160:161], v5, {S(SWS)}, s55 offen sc1')
    e('v_lshrrev_b32 v8, 8, v0'); e('v_and_b32 v9, 255, v0'); e('v_lshlrev_b32 v5, 20, v8'); e('v_lshl_add_u32 v5, v9, 2, v5')
    e('s_lshl_b32 s55, s56, 15'); e(f's_add_u32 s55, s55, {PARTB}')
    for s in range(32):
        e(f'buffer_load_dword v{96+s}, v5, {S(SWS)}, s55 offen offset:{(s&3)*1024} sc1')
        if s&3==3: e('s_add_u32 s55, s55, 4096')
    e('s_waitcnt vmcnt(32)')
    e('v_mov_b32 v162, v160'); rowred('v_max_f32',[162]); e('s_nop 1')
    e('ds_swizzle_b32 v163, v162 offset:0x401F'); e('s_waitcnt lgkmcnt(0)'); e('v_max_f32 v162, v162, v163')
    e('v_sub_f32 v160, v160, v162'); e('v_exp_f32 v160, v160'); e('s_nop 0'); e('v_mul_f32 v161, v160, v161')
    rowred('v_add_f32',[161]); e('s_nop 1')
    e('ds_swizzle_b32 v163, v161 offset:0x401F'); e('s_waitcnt lgkmcnt(0)'); e('v_add_f32 v161, v161, v163')
    e('v_rcp_f32 v161, v161'); e('s_nop 0'); e('v_mul_f32 v160, v160, v161')
    e('v_lshlrev_b32 v7, 2, v2'); e('v_lshl_add_u32 v7, v1, 8, v7'); e('ds_write_b32 v7, v160 offset:36864'); e('s_waitcnt lgkmcnt(0)')
    e('v_lshlrev_b32 v6, 8, v1'); e('v_lshl_add_u32 v6, v8, 7, v6')
    for q in range(8): e(f'ds_read_b128 v[{164+4*q}:{167+4*q}], v6 offset:{36864+q*16}')
    e('v_mov_b32 v10, 0'); e('v_mov_b32 v11, 0')
    e('s_waitcnt vmcnt(0) lgkmcnt(0)')
    for s in range(32):
        e(f'v_lshlrev_b32 v12, 16, v{96+s}'); e(f'v_and_b32 v13, 0xffff0000, v{96+s}')
        e(f'v_fmac_f32 v10, v{164+s}, v12'); e(f'v_fmac_f32 v11, v{164+s}, v13')
    e('v_lshlrev_b32 v5, 11, v8'); e('v_lshl_add_u32 v5, v9, 3, v5')
    e('ds_write_b64 v5, v[10:11] offset:20736')
    e('s_waitcnt lgkmcnt(0)'); e('s_barrier')
    e('v_lshrrev_b32 v5, 2, v0'); e('v_lshlrev_b32 v5, 2, v5'); e('v_and_b32 v7, 3, v0')
    for i in range(4):
        for b in range(2): e(f'ds_read_b32 v{96+2*i+b}, v5 offset:{20736+b*2048+i*512}')
    for k in range(16): e(f'v_mov_b32 v{112+k}, 0')
    e('s_waitcnt lgkmcnt(0)')
    for i in range(4):
        for j in range(4):
            e(f'v_lshlrev_b32 v8, 16, v{40+4*i+j}'); e(f'v_and_b32 v9, 0xffff0000, v{40+4*i+j}')
            for b in range(2):
                e(f'v_fmac_f32 v{112+b*8+2*j}, v{96+2*i+b}, v8'); e(f'v_fmac_f32 v{112+b*8+2*j+1}, v{96+2*i+b}, v9')
    for ror in (4,8):
        e('s_nop 1')
        for k in range(16): e(f'v_add_f32_dpp v{112+k}, v{112+k}, v{112+k} row_ror:{ror}'+DPP)
    e('v_lshrrev_b32 v5, 4, v0'); e('v_lshlrev_b32 v5, 8, v5'); e('v_lshl_add_u32 v5, v7, 6, v5')
    e('v_cmp_gt_u32 vcc, 4, v4'); e('s_and_saveexec_b64 s[62:63], vcc')
    for k in range(4): e(f'ds_write_b128 v5, v[{112+4*k}:{115+4*k}] offset:{24832+16*k}')
    e('s_mov_b64 exec, s[62:63]')
    e('s_waitcnt lgkmcnt(0)'); e('s_barrier')
    l0=w0_begin()
    e('v_lshlrev_b32 v5, 2, v0')
    for k in range(32): e(f'ds_read_b32 v{96+k}, v5 offset:{24832+256*k}')
    e('s_waitcnt lgkmcnt(0)')
    for k in range(1,32): e(f'v_add_f32 v96, v96, v{96+k}')
    e('v_cvt_pk_bf16_f32 v96, v96, v96'); e('v_lshlrev_b32 v96, 16, v96')
    e('v_lshlrev_b32 v5, 5, v3'); e('v_and_b32 v6, 7, v0'); e('v_lshl_add_u32 v5, v6, 2, v5')
    e('v_bfe_u32 v6, v0, 3, 1'); e('v_mul_u32_u24 v6, 144, v6'); e('v_add_u32 v5, v5, v6')
    e('ds_write_b32 v5, v96'); e('v_mov_b32 v97, 0'); e('ds_write_b32 v6, v97 offset:128'); e('s_waitcnt lgkmcnt(0)')
    w0_end(l0)
    lab('P3OUT')
    e('s_barrier')
    e('v_lshlrev_b32 v5, 2, v92')
    e('v_min_u32 v5, 8, v5')
    for i in range(11):
        for b in range(2): e(f'ds_read_b32 v{96+2*i+b}, v5 offset:{b*144+i*12}')
    for k in range(8): e(f'v_mov_b32 v{120+k}, 0')
    e('s_waitcnt vmcnt(0) lgkmcnt(0)')
    for i in range(11):
        for j in range(2):
            e(f'v_lshlrev_b32 v8, 16, v{16+2*i+j}'); e(f'v_and_b32 v9, 0xffff0000, v{16+2*i+j}')
            for b in range(2):
                e(f'v_fmac_f32 v{120+4*b+2*j}, v{96+2*i+b}, v8'); e(f'v_fmac_f32 v{121+4*b+2*j}, v{96+2*i+b}, v9')
    e('v_mul_u32_u24 v5, 4608, v92'); e('v_lshl_add_u32 v5, v93, 4, v5')
    e('ds_write_b128 v5, v[120:123] offset:1024'); e('ds_write_b128 v5, v[124:127] offset:3328')
    e('s_waitcnt lgkmcnt(0)'); e('s_barrier')
    e('v_cmp_gt_u32 vcc, 0x120, v0'); e('s_and_saveexec_b64 s[62:63], vcc'); l2=U('OSK'); e(f's_cbranch_execz {l2}')
    e('v_lshlrev_b32 v5, 4, v0')
    for g in range(3): e(f'ds_read_b128 v[{96+4*g}:{99+4*g}], v5 offset:{1024+4608*g}')
    e('s_waitcnt lgkmcnt(0)')
    for g in range(1,3):
        for k in range(4): e(f'v_add_f32 v{96+k}, v{96+k}, v{96+4*g+k}')
    e('s_mul_i32 s55, s2, 4608'); e(f's_add_u32 s55, s55, {OUTP}')
    e(f'buffer_store_dwordx4 v[96:99], v5, {S(SWS)}, s55 offen sc1')
    lab(l2); e('s_mov_b64 exec, s[62:63]')
    e('s_waitcnt vmcnt(0)'); e('s_barrier')
    l0=w0_begin()
    e('s_and_b32 s55, s2, 3'); e('s_lshl_b32 s55, s55, 2'); e('s_add_u32 s55, s55, 228'); signal('s55'); stamp(9)
    w0_end(l0)
    e('s_cmp_ge_u32 s2, 36'); e('s_cbranch_scc1 ENDS')
    l0=w0_begin()
    e('s_mov_b32 s55, 228'); wait('s55',4,64); stamp(10)
    w0_end(l0)
    e('s_barrier')
    e('s_cmp_ge_u32 s2, 18'); e('s_cselect_b32 s56, 1, 0')
    e('s_mul_i32 s57, s56, 18'); e('s_sub_u32 s57, s2, s57'); e('s_lshl_b32 s57, s57, 6')
    e('v_add_u32 v7, s57, v2')
    e('s_mul_i32 s55, s56, 589824'); e(f's_add_u32 s55, s55, {OUTP}')
    e('s_mov_b32 s58, 73728'); e('v_mul_lo_u32 v8, v1, s58'); e('v_lshl_add_u32 v8, v7, 2, v8')
    for k in range(16):
        e(f'buffer_load_dword v{96+k}, v8, {S(SWS)}, s55 offen sc1'); e('s_add_u32 s55, s55, 4608')
    e('s_waitcnt vmcnt(0)')
    for k in range(1,16): e(f'v_add_f32 v96, v96, v{96+k}')
    e('v_lshlrev_b32 v5, 2, v0'); e('ds_write_b32 v5, v96 offset:32768'); e('s_waitcnt lgkmcnt(0)'); e('s_barrier')
    e('s_cmp_lg_u32 s60, 0'); e('s_cbranch_scc1 END')
    for w in range(8): e(f'ds_read_b32 v{96+w}, v5 offset:{32768+256*w}')
    e('s_waitcnt lgkmcnt(0)')
    for w in range(1,8): e(f'v_add_f32 v96, v96, v{96+w}')
    e('v_cvt_pk_bf16_f32 v96, v96, v96')
    e('v_cmp_le_u32 vcc, 0x240, v7'); e('v_mov_b32 v6, 0x240'); e('s_nop 1'); e('v_cndmask_b32 v6, 0, v6, vcc')
    e('v_add_u32 v6, v6, v7'); e('s_mul_i32 s58, s56, 576'); e('v_add_u32 v6, s58, v6'); e('v_lshlrev_b32 v6, 1, v6')
    e(f'buffer_store_short v96, v6, {S(SOUT)}, 0 offen')

hdr=open(f'cdna_kernels/{NAME}.s.ref').read().split('\n')
hdr=[h for h in hdr if h.startswith(';') and '@launch' not in h and not h.startswith('; Override') and not h.startswith('; grid=ceil')]
L+=hdr
L+=['; @launch grid=(256,1,1) block=(512,1,1) lds=106496','.amdgcn_target "amdgcn-amd-amdhsa--gfx950"','.text']
body()
L+=['.section .rodata,"a"','.p2align 6',f'.amdhsa_kernel {NAME}_kernel','  .amdhsa_next_free_vgpr 256','  .amdhsa_next_free_sgpr 102','  .amdhsa_accum_offset 256',
    '  .amdhsa_group_segment_fixed_size 0','  .amdhsa_kernarg_size 112','  .amdhsa_user_sgpr_count 2','  .amdhsa_user_sgpr_kernarg_segment_ptr 1',
    '  .amdhsa_system_sgpr_workgroup_id_x 1','.end_amdhsa_kernel']
open(OUT,'w').write('\n'.join(L)+'\n')
```
